```python
import torch

def _softmax(x, axis=-1):
    return torch.softmax(x, dim=axis)

def _gelu(x):
    return torch.nn.functional.gelu(x, approximate='tanh')

def _silu(x):
    return torch.nn.functional.silu(x)

def _sigmoid(x):
    return torch.sigmoid(x)

def _layernorm(x, axis=-1, eps=1e-05):
    m = x.mean(dim=axis, keepdim=True)
    v = x.var(dim=axis, keepdim=True, unbiased=False)
    return (x - m) / torch.sqrt(v + eps)

def _scatter_add(tgt, idx, src, axis=0):
    return tgt.clone().index_add_(axis, idx, src)

def _segment_sum(src, seg, n):
    out = torch.zeros((n,) + src.shape[1:], dtype=src.dtype)
    return out.index_add_(0, seg, src)

def _pad(x, pw):
    flat = tuple((v for pair in reversed(pw) for v in pair))
    return torch.nn.functional.pad(x, flat)
kernel_name = 'sequential_preLN__softmax_full_mha__mixer_gmlp__prompt'

def setup_inputs():

    _w = lambda a: (lambda t: t.to(torch.bfloat16) if t.is_floating_point() else t)(torch.as_tensor(a))

    def _A_setup():
        B, S, D = (1, 2048, 448)
        return {'x': _w((lambda *s: torch.randn(*s, dtype=torch.bfloat16) * 0.05)(B, S, D)), 'wqkv': _w((lambda *s: torch.randn(*s, dtype=torch.bfloat16) * 0.05)(D, 3 * D)), 'wo': _w((lambda *s: torch.randn(*s, dtype=torch.bfloat16) * 0.05)(D, D))}
    _A_in = _A_setup()

    def _B_setup():
        B, S, D, F = (1, 2048, 448, 1792)
        Fh = F // 2
        return {'x': _w((lambda *s: torch.randn(*s, dtype=torch.bfloat16) * 0.05)(B, S, D)), 'w_in': _w((lambda *s: torch.randn(*s, dtype=torch.bfloat16) * 0.4)(D, 2 * Fh)), 'w_sp': _w(0.01 * (lambda *s: torch.randn(*s, dtype=torch.bfloat16) * 0.4)(S, S)), 'b_sp': _w(1.0 + 0.01 * (lambda *s: torch.randn(*s, dtype=torch.bfloat16) * 0.05)(S)), 'w_out': _w((lambda *s: torch.randn(*s, dtype=torch.bfloat16) * 0.05)(Fh, D))}
    _B_in = _B_setup()
    return {'A_x': _A_in['x'], 'A_wqkv': _A_in['wqkv'], 'A_wo': _A_in['wo'], 'B_x': _B_in['x'], 'B_w_in': _B_in['w_in'], 'B_w_sp': _B_in['w_sp'], 'B_b_sp': _B_in['b_sp'], 'B_w_out': _B_in['w_out']}

def reference(A_x, A_wqkv, A_wo, B_x, B_w_in, B_w_sp, B_b_sp, B_w_out):

    def _A_ref(x, wqkv, wo):
        B, S, D = x.shape
        H = 16
        Dh = D // H
        qkv = (lambda x, *d: x.permute(*d))((x @ wqkv).reshape(B, S, 3, H, Dh), 2, 0, 3, 1, 4)
        q, k, v = (qkv[0], qkv[1], qkv[2])
        scale = Dh ** (-0.5)
        scores = torch.einsum('bhqd,bhkd->bhqk', q, k) * scale
        p = _softmax(scores, axis=-1)
        o = torch.einsum('bhqk,bhkd->bhqd', p, v)
        return (lambda x, *d: x.permute(*d))(o, 0, 2, 1, 3).reshape(B, S, D) @ wo

    def _B_ref(x, w_in, w_sp, b_sp, w_out):
        B, S, D = x.shape
        F = w_in.shape[-1]
        Fh = F // 2
        z = _gelu(torch.einsum('bsd,df->bsf', x, w_in))
        z1 = z[..., :Fh].clone()
        z2 = _layernorm(z[..., Fh:], axis=-1)
        g = torch.einsum('ts,bsf->btf', w_sp, z2) + b_sp[None, :, None]
        return torch.einsum('bsf,fd->bsd', z1 * g, w_out)
    x = A_x
    h = x + _A_ref(_layernorm(x, axis=-1), A_wqkv, A_wo)
    h2 = h + _B_ref(_layernorm(h, axis=-1), B_w_in, B_w_sp, B_b_sp, B_w_out)
    return h2
```

```python
import re

def regs_of(tok):
    tok = tok.strip()
    tok = tok.lstrip('-')
    m = re.fullmatch(r'abs\((.*)\)', tok)
    if m: tok = m.group(1)
    tok = tok.strip('|')
    m = re.fullmatch(r'([vas])(\d+)', tok)
    if m: return {(m.group(1), int(m.group(2)))}
    m = re.fullmatch(r'([vas])\[(\d+):(\d+)\]', tok)
    if m: return {(m.group(1), i) for i in range(int(m.group(2)), int(m.group(3))+1)}
    if tok == 'vcc': return {('s', 'vcc_lo'), ('s', 'vcc_hi')}
    if tok in ('vcc_lo', 'vcc_hi'): return {('s', tok)}
    if tok == 'exec': return {('s', 'exec_lo'), ('s', 'exec_hi')}
    if tok in ('exec_lo', 'exec_hi'): return {('s', tok)}
    if tok == 'm0': return {('s', 'm0')}
    return set()

def split_ops(s):
    out, depth, cur = [], 0, ''
    for ch in s:
        if ch in '[(': depth += 1
        if ch in '])': depth -= 1
        if ch == ',' and depth == 0:
            out.append(cur.strip()); cur = ''
        else: cur += ch
    if cur.strip(): out.append(cur.strip())
    return out

TRANS = re.compile(r'v_(exp|log|rcp|rsq|sqrt|sin|cos)_f(16|32)')
class Ins:
    __slots__ = ('text','mn','ops','mods','dst','src','kind','label','target','passes','srcC','srcAB','meta')
    def __init__(self, text):
        self.text = text; self.label = None; self.target = None; self.meta = None
        self.dst = set(); self.src = set(); self.passes = 0; self.srcC = set(); self.srcAB = set()
        t = text.split(';')[0].strip()
        if t.endswith(':'):
            self.kind = 'label'; self.label = t[:-1]; self.mn = ''; self.ops = []; self.mods = ''; return
        if t.startswith('.') or t == '':
            self.kind = 'dir'; self.mn = ''; self.ops = []; self.mods = ''; return
        p = t.split(None, 1); self.mn = mn = p[0]
        rest = p[1] if len(p) > 1 else ''
        ops = split_ops(rest)
        mods = ''
        if ops:
            last = ops[-1]
            m = re.match(r'^(\S+(?:\([^)]*\))?)\s+(.*)$', last)
            if m and not mn.startswith('s_waitcnt'):
                ops[-1] = m.group(1); mods = m.group(2)
        self.ops = ops; self.mods = mods
        R = [regs_of(o) for o in ops]
        U = lambda l: set().union(*l) if l else set()
        if mn.startswith('v_mfma'):
            self.kind = 'mfma'; self.dst = R[0]; self.srcAB = R[1] | R[2]; self.srcC = R[3]; self.src = self.srcAB | self.srcC
            self.passes = 8 if '32x32' in mn else 4
        elif mn.startswith('v_'):
            self.kind = 'valu'
            if mn.startswith('v_cmpx'):
                self.dst = R[0] | regs_of('exec'); self.src = U(R[1:])
            elif mn.startswith('v_cmp'):
                self.dst = R[0]; self.src = U(R[1:])
            elif mn.startswith('v_permlane') or mn.startswith('v_swap'):
                self.dst = R[0] | R[1]; self.src = R[0] | R[1]
            elif re.match(r'v_(add|sub|subrev|addc|subb)_co_', mn):
                self.dst = R[0] | R[1]; self.src = U(R[2:])
            elif mn.startswith(('v_fmac', 'v_dot2c', 'v_writelane')) or 'UNUSED_PRESERVE' in mods or ('_dpp' in mn):
                self.dst = R[0]; self.src = U(R)
            elif mn == 'v_nop':
                pass
            else:
                self.dst = R[0]; self.src = U(R[1:])
        elif mn.startswith(('buffer_load', 'global_load')):
            self.kind = 'vmem'
            if re.search(r'\blds\b', mods) or '_lds_' in mn:
                self.src = U(R) | {('s', 'm0')}; self.meta = 'dma'
            else:
                self.dst = R[0]; self.src = U(R[1:])
        elif mn.startswith(('buffer_store', 'global_store')):
            self.kind = 'vmem'; self.src = U(R); self.meta = 'store'
        elif mn.startswith(('buffer_atomic', 'global_atomic')):
            self.kind = 'vmem'; self.src = U(R); self.meta = 'store'
            if 'sc0' in mods: self.dst = R[0]
        elif mn.startswith(('buffer_inv', 'buffer_wbl2')):
            self.kind = 'vmem'; self.meta = 'store'
        elif mn.startswith(('ds_read', 'ds_bpermute', 'ds_permute', 'ds_swizzle')):
            self.kind = 'ds'; self.dst = R[0]; self.src = U(R[1:])
        elif mn.startswith('ds_'):
            self.kind = 'ds'; self.src = U(R)
        elif mn.startswith(('s_load', 's_memtime', 's_memrealtime', 's_buffer_load')):
            self.kind = 'smem'; self.dst = R[0]; self.src = U(R[1:])
        elif mn.startswith(('s_cbranch', 's_branch')):
            self.kind = 'branch'; self.target = ops[0]
            if 'vcc' in mn: self.src = regs_of('vcc')
            if 'exec' in mn: self.src = regs_of('exec')
        elif mn in ('s_waitcnt', 's_barrier', 's_nop', 's_sleep', 's_endpgm', 's_setprio'):
            self.kind = mn[2:]
        elif mn.startswith('s_cmp') or mn.startswith('s_bitcmp'):
            self.kind = 'salu'; self.src = U(R)
        elif mn.startswith('s_'):
            self.kind = 'salu'; self.dst = R[0]; self.src = U(R[1:])
            if 'saveexec' in mn: self.dst |= regs_of('exec'); self.src |= regs_of('exec')
            if mn.startswith(('s_addk', 's_mulk')): self.src |= R[0]
        else:
            raise ValueError('unknown instruction: ' + text)
    def states(self):
        if self.kind in ('label', 'dir'): return 0
        if self.kind == 'nop': return int(self.ops[0], 0) + 1
        return 1

def vec(rs): return {r for r in rs if r[0] in 'va'}
def sca(rs): return {r for r in rs if r[0] == 's'}

def need(p, c):
    n = 0
    if p.kind == 'valu':
        pv, ps = vec(p.dst), sca(p.dst)
        if c.kind == 'mfma' and pv & c.src: n = max(n, 2)
        if c.kind == 'valu':
            if c.mn.startswith('v_permlane') and pv & c.src: n = max(n, 2)
            if '_dpp' in c.mn and pv & c.src: n = max(n, 2)
            if c.mn.startswith(('v_readlane', 'v_readfirstlane')) and pv & c.src: n = max(n, 1)
            if TRANS.match(p.mn) and not TRANS.match(c.mn) and pv & c.src: n = max(n, 1)
            if ps & c.src: n = max(n, 4 if c.mn.startswith(('v_readlane', 'v_writelane')) else 2)
            if ('_sdwa' in p.mn or 'op_sel' in p.mods and not p.mn.startswith('v_pk_')) and pv & (c.src | c.dst): n = max(n, 1)
            if p.mn.startswith('v_dot') and pv & (c.src | c.dst):
                if c.mn == p.mn and not (pv & set().union(*[regs_of(o) for o in c.ops[1:3]])): pass
                else: n = max(n, 3)
        if p.mn.startswith('v_dot') and c.kind in ('mfma', 'vmem', 'ds') and pv & (c.src | c.dst): n = max(n, 3)
        if TRANS.match(p.mn) and c.kind in ('vmem', 'ds') and pv & c.src: n = max(n, 1)
        if c.kind == 'vmem' and ps & c.src: n = max(n, 5)
        if ('s', 'exec_lo') in ps:
            if c.kind == 'mfma' or c.mn.startswith(('v_permlane', 'v_readlane', 'v_readfirstlane', 'v_writelane')): n = max(n, 4)
            if '_dpp' in c.mn: n = max(n, 5)
        if c.kind in ('salu', 'branch', 'smem') and ps & c.src: n = max(n, 2)
    if p.kind == 'mfma':
        big = 12 if p.passes == 8 else 8
        if c.kind == 'mfma':
            if p.dst & c.srcAB: n = max(n, big)
            if p.dst & c.srcC:
                if not (p.dst == c.srcC and p.passes == c.passes): n = max(n, big - 2)
            elif p.dst & c.dst and not (p.dst == c.dst and p.passes == c.passes): n = max(n, big - 2)
        elif c.kind in ('valu', 'vmem', 'ds'):
            if p.dst & (c.src | c.dst): n = max(n, big)
        if c.kind == 'valu' and p.srcC & c.dst: n = max(n, 7 if p.passes == 8 else 3)
    if p.kind == 'salu' and ('s', 'm0') in p.dst and c.meta == 'dma': n = max(n, 1)
    if p.kind == 'vmem' and p.meta == 'store' and re.search(r'x[34]$', p.mn):
        data = regs_of(p.ops[0]) if p.mn.startswith('buffer') else regs_of(p.ops[1])
        if data & c.dst: n = max(n, 2 if c.kind in ('valu', 'mfma') else 1)
    return n

class Asm:
    def __init__(self):
        self.ins = []
        self.vmq = []
        self.lgq = []
        self.smem = set()
        self.nid = 0
        self.auto = True
    def __call__(self, text):
        for line in text.split('\n'):
            line = line.strip()
            if not line or line.startswith(';'): continue
            self.emit(Ins(line))
        return self
    def raw(self, i): self.ins.append(i)
    def emit(self, i):
        if i.kind == 'waitcnt':
            self._apply_wait(i.text); self.raw(i); return
        if self.auto and i.kind not in ('label', 'dir'):
            touch = i.src | i.dst
            vm = lg = None
            for idx, (_, d) in enumerate(self.vmq):
                if d & touch: vm = len(self.vmq) - 1 - idx
            for idx, (_, d) in enumerate(self.lgq):
                if d & touch: lg = len(self.lgq) - 1 - idx
            if self.smem & touch: lg = 0
            if lg is not None and self.smem: lg = 0
            if vm is not None or lg is not None:
                self.wait(vm=vm, lg=lg)
        self.raw(i)
        if i.kind == 'vmem':
            self.nid += 1; self.vmq.append((self.nid, vec(i.dst)))
        elif i.kind == 'ds':
            self.nid += 1; self.lgq.append((self.nid, vec(i.dst)))
        elif i.kind == 'smem':
            self.smem |= i.dst
    def wait(self, vm=None, lg=None):
        parts = []
        if vm is not None: parts.append('vmcnt(%d)' % min(vm, 63))
        if lg is not None: parts.append('lgkmcnt(%d)' % min(lg, 15))
        self.emit(Ins('s_waitcnt ' + ' '.join(parts)))
    def _apply_wait(self, text):
        m = re.search(r'vmcnt\((\d+)\)', text)
        if m:
            n = int(m.group(1)); self.vmq = self.vmq[len(self.vmq)-n:] if n and n < len(self.vmq) else ([] if n == 0 else self.vmq)
        m = re.search(r'lgkmcnt\((\d+)\)', text)
        if m:
            n = int(m.group(1))
            if n == 0: self.lgq = []; self.smem = set()
            elif not self.smem and n < len(self.lgq): self.lgq = self.lgq[len(self.lgq)-n:]
    def mark(self):
        return self.nid
    def wait_vm(self, t):
        n = sum(1 for (i, _) in self.vmq if i > t)
        if n < len(self.vmq): self.wait(vm=n)
    def wait_lg(self, t):
        n = sum(1 for (i, _) in self.lgq if i > t)
        if self.smem: n = 0
        if n < len(self.lgq): self.wait(lg=n)
    def drain(self):
        self.wait(vm=0, lg=0)
    def label(self, name): self.raw(Ins(name + ':'))
    def fix_hazards(self, verbose=False):
        ins = self.ins
        labels = {x.label: n for n, x in enumerate(ins) if x.kind == 'label'}
        preds = [[] for _ in ins]
        for n, x in enumerate(ins):
            if x.kind == 'branch' and x.target in labels: preds[labels[x.target]].append(n)
            if n + 1 < len(ins) and x.mn not in ('s_branch', 's_endpgm'): preds[n+1].append(n)
        extra = [0]*len(ins)
        total = 0
        for n, c in enumerate(ins):
            if c.kind in ('label', 'dir', 'nop', 'waitcnt', 'barrier', 'sleep', 'endpgm', 'setprio'): continue
            worst = 0; why = None
            stack = [(p, 0) for p in preds[n]]; seen = {}
            while stack:
                m, d = stack.pop()
                if d >= 12 or seen.get(m, 99) <= d: continue
                seen[m] = d
                p = ins[m]
                if p.kind not in ('label', 'dir'):
                    r = need(p, c) - d
                    if r > worst: worst = r; why = p
                for q in preds[m]: stack.append((q, d + p.states() + extra[m]))
            if worst > 0:
                if verbose: print('nop', worst, '|', why.text, '->', c.text)
                extra[n] = worst; total += worst
        out = []
        for n, c in enumerate(ins):
            if extra[n]: out.append(Ins('s_nop %d' % (extra[n] - 1)))
            out.append(c)
        self.ins = out
        return total
    def text(self):
        return '\n'.join((x.text if x.kind in ('label', 'dir') else '    ' + x.text) for x in self.ins)

def v(a, n=1): return 'v%d' % a if n == 1 else 'v[%d:%d]' % (a, a+n-1)
def a(x, n=1): return 'a%d' % x if n == 1 else 'a[%d:%d]' % (x, x+n-1)
def s(x, n=1): return 's%d' % x if n == 1 else 's[%d:%d]' % (x, x+n-1)
```

```python
import math
G = None
def setup(g):
    globals().update({n: x for n, x in g.items() if not n.startswith('__')})

LDS_RED = 108544
LDS_MISC = 157696

def p2():
    Q = 16
    O = 48
    S = 112
    P = 144
    KV = 160
    vL16, vPoll, vT = 2, 3, 4
    T = 224
    sKV, sCNT, sSO, sFB = sT+2, sT+3, sT+4, sT+5
    k(f'''
    s_mul_i32 {s(sT+1)}, {s(sH)}, 28
    s_lshr_b32 {s(sT+2)}, {s(sT+1)}, 6
    s_add_u32 {s(sT+1)}, {s(sT+1)}, 27
    s_lshr_b32 {s(sT+3)}, {s(sT+1)}, 6
    s_lshl_b32 {s(sT+2)}, {s(sT+2)}, 9
    s_lshl_b32 {s(sT+3)}, {s(sT+3)}, 9
    s_lshl_b32 {s(sT+4)}, {s(sI)}, 1
    s_lshr_b32 {s(sT+5)}, {s(sW)}, 1
    s_add_u32 {s(sT+4)}, {s(sT+4)}, {s(sT+5)}
    s_lshr_b32 {s(sT+5)}, {s(sT+4)}, 3
    s_lshl_b32 {s(sT+5)}, {s(sT+5)}, 7
    s_and_b32 {s(sT+4)}, {s(sT+4)}, 7
    s_lshl_b32 {s(sT+4)}, {s(sT+4)}, 2
    s_add_u32 {s(sT+4)}, {s(sT+4)}, {s(sT+5)}
    s_lshl_b32 {s(sT+5)}, {s(sW)}, 7
    v_and_b32 v8, 7, v1
    v_lshl_add_u32 v8, v8, 2, {s(sT+5)}
    v_mov_b32 v9, {s(sT+4)}
    v_cmp_gt_u32 vcc, 16, v1
    v_cndmask_b32 v8, v9, v8, vcc
    v_mov_b32 v9, {s(sT+2)}
    v_mov_b32 v10, {s(sT+3)}
    v_and_b32 v11, 8, v1
    v_cmp_eq_u32 vcc, 0, v11
    v_cndmask_b32 v9, v10, v9, vcc
    v_add_u32 v8, v8, v9
    v_add_u32 {v(vPoll)}, {WS_F1}, v8
    v_lshlrev_b32 {v(vL16)}, 4, v1
    s_lshl_b32 {s(sT+6)}, {s(sH)}, 18
    s_lshl_b32 {s(sT+7)}, {s(sW)}, 16
    s_add_u32 {s(sKV)}, {s(sT+6)}, {s(sT+7)}
    s_add_u32 {s(sKV)}, {s(sKV)}, {WS_KV}
    s_lshl_b32 {s(sT+7)}, {s(sI)}, 2
    s_add_u32 {s(sT+7)}, {s(sT+7)}, {s(sW)}
    s_lshl_b32 {s(sT+7)}, {s(sT+7)}, 12
    s_add_u32 {s(sT+6)}, {s(sT+6)}, {s(sT+7)}
    s_add_u32 {s(sT+6)}, {s(sT+6)}, {WS_Q}
    s_mov_b32 {s(sFB)}, 0
    ''')
    vQW, vQR, vRW, vRR, vZ = 5, 8, 12, 15, 6
    k(f'''
    s_lshl_b32 {s(sT+7)}, {s(sW)}, 11
    s_add_u32 {s(sT+7)}, {s(sT+7)}, {LDS_RED}
    v_add_u32 {v(vQW)}, {s(sT+7)}, {v(vL16)}
    v_mov_b32 {v(vZ)}, {LDS_MISC}
    s_mul_i32 {s(sT+7)}, {s(sW)}, 12288
    s_add_u32 {s(sT+7)}, {s(sT+7)}, {LDS_RED}
    v_add_u32 {v(vRR)}, {s(sT+7)}, {v(vL16)}
    ''')
    for bl in range(4):
        k(f'''
        s_add_u32 {s(sT+7)}, {s(sW)}, {bl+1}
        s_and_b32 {s(sT+7)}, {s(sT+7)}, 3
        s_lshl_b32 {s(sT+8)}, {s(sT+7)}, 11
        s_add_u32 {s(sT+8)}, {s(sT+8)}, {LDS_RED}
        v_add_u32 {v(vQR+bl)}, {s(sT+8)}, {v(vL16)}
        ''')
        if bl < 3:
            k(f'''
            s_mul_i32 {s(sT+8)}, {s(sT+7)}, 12288
            s_add_u32 {s(sT+8)}, {s(sT+8)}, {LDS_RED + bl*4096}
            v_add_u32 {v(vRW+bl)}, {s(sT+8)}, {v(vL16)}
            ''')
    poll(vPoll, vT)
    stamp()
    def ldK(buf, so, blkoff=0):
        for c in range(2):
            k(f'buffer_load_dwordx4 {v(KV+16*buf+4*c,4)}, {v(vL16)}, {srd(WS_)}, {s(so)} offen offset:{1024*c} sc1')
    def ldV(buf, so):
        for c in range(2):
            k(f'buffer_load_dwordx4 {v(KV+16*buf+8+4*c,4)}, {v(vL16)}, {srd(WS_)}, {s(so)} offen offset:{2048+1024*c} sc1')
    QO = Q + 24
    for c in range(2):
        k(f'buffer_load_dwordx4 {v(QO+4*c,4)}, {v(vL16)}, {srd(WS_)}, {s(sT+6)} offen offset:{1024*c} sc1')
    def kv_prologue():
        k(f's_mov_b32 {s(sSO)}, {s(sKV)}')
        for it in range(4):
            ldK(it, sSO)
            if it < 3:
                ldV(it, sSO)
                k(f's_add_u32 {s(sSO)}, {s(sSO)}, 4096')
    kv_prologue()
    k(f'v_mfma_f32_32x32x16_bf16 {v(S,16)}, {v(KV,4)}, {v(QO,4)}, 0')
    k(f'v_mfma_f32_32x32x16_bf16 {v(S,16)}, {v(KV+4,4)}, {v(QO+4,4)}, {v(S,16)}')
    def zero_acc():
        for r in range(64): k(f'v_mov_b32 {v(O+r)}, 0')
        for r in range(8): k(f'v_mov_b32 {v(P+8+r)}, 0')
        for r in range(8): k(f'v_mov_b32 {v(KV+56+r)}, 0')
    zero_acc()
    k(f'v_max3_f32 {v(T)}, {v(S)}, {v(S+1)}, {v(S+2)}')
    k(f'v_max3_f32 {v(T+1)}, {v(S+3)}, {v(S+4)}, {v(S+5)}')
    for r in range(6, 16, 4):
        k(f'v_max3_f32 {v(T)}, {v(T)}, {v(S+r)}, {v(S+r+1)}')
        if r + 3 < 16: k(f'v_max3_f32 {v(T+1)}, {v(T+1)}, {v(S+r+2)}, {v(S+r+3)}')
    k(f'''
    v_max_f32 {v(T)}, {v(T)}, {v(T+1)}
    v_mov_b32 {v(T+1)}, {v(T)}
    v_permlane32_swap_b32 {v(T)}, {v(T+1)}
    v_max_f32 {v(T)}, {v(T)}, {v(T+1)}
    ''')
    if OPT['force_fallback']: k(f'v_add_f32 {v(T)}, {hx(fbits(-200.0))}, {v(T)}')
    Lodd, Lpd = lbl('odd'), lbl('pd')
    k(f'''
    v_cvt_pk_bf16_f32 {v(T)}, -{v(T)}, 0
    v_mov_b32 {v(T+2)}, 0
    s_mov_b64 exec, {HI}
    s_bitcmp1_b32 {s(sH)}, 0
    s_cbranch_scc1 {Lodd}
    v_mov_b32 {v(QO+6)}, {v(T)}
    s_branch {Lpd}
    {Lodd}:
    v_mov_b32 {v(QO+4)}, {v(T)}
    {Lpd}:
    s_mov_b64 exec, -1
    ds_write_b128 {v(vQW)}, {v(QO,4)}
    ds_write_b128 {v(vQW)}, {v(QO+4,4)} offset:1024
    ds_write_b32 {v(vZ)}, {v(T+2)}
    s_waitcnt lgkmcnt(0)
    s_barrier
    ''')
    for bl in range(3):
        for c in range(2):
            k(f'ds_read_b128 {v(Q+8*bl+4*c,4)}, {v(vQR+bl)} offset:{1024*c}')
    k('s_waitcnt lgkmcnt(0)')
    k('s_barrier')
    k.label('L_att_main')
    k(f's_mov_b32 {s(sCNT)}, 0')
    k('s_waitcnt vmcnt(10)')
    k(f'v_mfma_f32_32x32x16_bf16 {v(S,16)}, {v(KV,4)}, {v(Q,4)}, 0')
    k(f'v_mfma_f32_32x32x16_bf16 {v(S,16)}, {v(KV+4,4)}, {v(Q+4,4)}, {v(S,16)}')
    k('s_nop 10')
    stamp_here = OPT['stamps']
    k.auto = False
    k.label('L_att_loop')
    for it in range(4):
        for b in range(4):
            t = 4*it + b
            Sc, Sn = S + 16*(t & 1), S + 16*((t+1) & 1)
            Pc, Pp = P + 8*(t & 1), P + 8*((t+1) & 1)
            kb = KV + 16*(((t+1) >> 2) & 3); qb = Q + 8*((t+1) & 3)
            vb = KV + 16*(((t-1) >> 2) & 3) + 8; ob = O + 16*((t-1) & 3)
            def ex(g):
                for r in range(4): k(f'v_exp_f32 {v(Sc+4*g+r)}, {v(Sc+4*g+r)}')
                for r in range(2): k(f'v_cvt_pk_bf16_f32 {v(Pc+2*g+r)}, {v(Sc+4*g+2*r)}, {v(Sc+4*g+2*r+1)}')
            if b == 3: k('s_waitcnt vmcnt(10)')
            k(f'v_mfma_f32_32x32x16_bf16 {v(Sn,16)}, {v(kb,4)}, {v(qb,4)}, 0')
            ex(0)
            k(f'v_mfma_f32_32x32x16_bf16 {v(Sn,16)}, {v(kb+4,4)}, {v(qb+4,4)}, {v(Sn,16)}')
            if b == 2: ldK(it, sSO)
            ex(1)
            k(f'v_mfma_f32_32x32x16_bf16 {v(ob,16)}, {v(vb,4)}, {v(Pp,4)}, {v(ob,16)}')
            ex(2)
            k(f'v_mfma_f32_32x32x16_bf16 {v(ob,16)}, {v(vb+4,4)}, {v(Pp+4,4)}, {v(ob,16)}')
            if b == 0:
                ldV((it+3) & 3, sSO)
                if it == 0:
                    k(f's_add_u32 {s(sSO)}, {s(sSO)}, 4096')
                    k(f's_cmp_eq_u32 {s(sCNT)}, 3')
                    k(f's_cselect_b32 {s(sSO)}, {hx(OOB)}, {s(sSO)}')
                else:
                    k(f's_add_u32 {s(sSO)}, {s(sSO)}, 4096')
            if t == 15:
                k(f's_add_u32 {s(sCNT)}, {s(sCNT)}, 1')
                k(f's_cmp_lt_u32 {s(sCNT)}, 4')
            ex(3)
    k('s_cbranch_scc1 L_att_loop')
    k.auto = True
    k.vmq = []
    vb = KV + 48 + 8; ob = O + 48; Pp = P + 8
    k(f'v_mfma_f32_32x32x16_bf16 {v(ob,16)}, {v(vb,4)}, {v(Pp,4)}, {v(ob,16)}')
    k(f'v_mfma_f32_32x32x16_bf16 {v(ob,16)}, {v(vb+4,4)}, {v(Pp+4,4)}, {v(ob,16)}')
    stamp()
    for bl in range(3):
        for q in range(4):
            k(f'ds_write_b128 {v(vRW+bl)}, {v(O+16*bl+4*q,4)} offset:{1024*q}')
    Lok = lbl('ok')
    k(f'''
    v_max3_f32 {v(T)}, {v(O+12)}, {v(O+28)}, {v(O+44)}
    v_max_f32 {v(T)}, {v(T)}, {v(O+60)}
    v_cmp_nge_f32 vcc, {hx(fbits(2.0**30))}, {v(T)}
    s_and_b64 vcc, vcc, {HI}
    s_cbranch_vccz {Lok}
    v_mov_b32 {v(T+2)}, 1
    ds_write_b32 {v(vZ)}, {v(T+2)}
    {Lok}:
    s_waitcnt vmcnt(0) lgkmcnt(0)
    s_barrier
    ds_read_b32 {v(T+2)}, {v(vZ)}
    ''')
    R = 160
    for j in range(12): k(f'ds_read_b128 {v(R+4*j,4)}, {v(vRR)} offset:{1024*j}')
    k(f'''
    s_lshl_b32 {s(sT+6)}, {s(sI)}, 3
    s_lshl_b32 {s(sT+7)}, {s(sW)}, 1
    s_add_u32 {s(sT+6)}, {s(sT+6)}, {s(sT+7)}
    s_lshl_b32 {s(sT+6)}, {s(sT+6)}, 14
    s_lshl_b32 {s(sT+7)}, {s(sH)}, 10
    s_add_u32 {s(sT+6)}, {s(sT+6)}, {s(sT+7)}
    s_add_u32 {s(sT+6)}, {s(sT+6)}, {WS_O}
    v_bfe_u32 {v(T+4)}, v1, 4, 1
    v_lshlrev_b32 {v(T+4)}, 14, {v(T+4)}
    v_lshrrev_b32 {v(T+5)}, 5, v1
    v_lshl_add_u32 {v(T+4)}, {v(T+5)}, 8, {v(T+4)}
    v_and_b32 {v(T+5)}, 15, v1
    v_lshl_add_u32 {v(T+4)}, {v(T+5)}, 4, {v(T+4)}
    v_readfirstlane_b32 {s(sT+7)}, {v(T+2)}
    s_cmp_gt_u32 {s(sT+7)}, {s(sFB)}
    s_cbranch_scc1 L_att_fallback
    ''')
    OO = O + 48
    for j in range(3):
        for r in range(0, 16, 2):
            k(f'v_pk_add_f32 {v(OO+r,2)}, {v(OO+r,2)}, {v(R+16*j+r,2)}')
    k(f'''
    v_mov_b32 {v(T)}, {v(OO+12)}
    v_mov_b32 {v(T+1)}, {v(OO+12)}
    v_permlane32_swap_b32 {v(T)}, {v(T+1)}
    v_rcp_f32 {v(T)}, {v(T+1)}
    ''')
    for r in range(0, 16, 2):
        k(f'v_pk_mul_f32 {v(OO+r,2)}, {v(OO+r,2)}, {v(T,2)} op_sel_hi:[1,0]')
    for r in range(8): k(f'v_cvt_pk_bf16_f32 {v(P+r)}, {v(OO+2*r)}, {v(OO+2*r+1)}')
    k(f'''
    v_cndmask_b32 {v(P+6)}, {v(P+6)}, 0, {HI}
    v_cndmask_b32 {v(P+7)}, {v(P+7)}, 0, {HI}
    buffer_store_dwordx4 {v(P,4)}, {v(T+4)}, {srd(WS_)}, {s(sT+6)} offen sc1
    buffer_store_dwordx4 {v(P+4,4)}, {v(T+4)}, {srd(WS_)}, {s(sT+6)} offen offset:512 sc1
    s_lshl_b32 {s(sT+1)}, {s(sI)}, 7
    s_lshl_b32 {s(sT+2)}, {s(sH)}, 2
    s_add_u32 {s(sT+1)}, {s(sT+1)}, {s(sT+2)}
    s_add_u32 {s(sT+1)}, {s(sT+1)}, {WS_F2}
    ''')
    signal(sT+1, T)
    k('s_branch L_att_done')
    k.label('L_att_fallback')
    k.vmq = []; k.lgq = []
    M = T + 8
    Lo2, Lp2, Lm = lbl('odd'), lbl('pd'), lbl('mx')
    k(f'''
    s_waitcnt vmcnt(0) lgkmcnt(0)
    s_barrier
    s_mov_b32 {s(sFB)}, 1
    s_mov_b64 exec, {HI}
    s_bitcmp1_b32 {s(sH)}, 0
    s_cbranch_scc1 {Lo2}
    ''')
    for bl in range(4): k(f'v_mov_b32 {v(Q+8*bl+6)}, 0')
    k(f's_branch {Lp2}')
    k.label(Lo2)
    for bl in range(4): k(f'v_mov_b32 {v(Q+8*bl+4)}, 0')
    k.label(Lp2)
    k('s_mov_b64 exec, -1')
    for bl in range(4): k(f'v_mov_b32 {v(M+bl)}, 0xff800000')
    k(f's_mov_b32 {s(sSO)}, {s(sKV)}')
    k(f's_mov_b32 {s(sCNT)}, 0')
    k.label(Lm)
    ldK(0, sSO)
    k('s_waitcnt vmcnt(0)')
    for bl in range(4):
        k(f'v_mfma_f32_32x32x16_bf16 {v(S,16)}, {v(KV,4)}, {v(Q+8*bl,4)}, 0')
        k(f'v_mfma_f32_32x32x16_bf16 {v(S,16)}, {v(KV+4,4)}, {v(Q+8*bl+4,4)}, {v(S,16)}')
        for r in range(0, 16, 2): k(f'v_max3_f32 {v(M+bl)}, {v(M+bl)}, {v(S+r)}, {v(S+r+1)}')
    k(f'''
    s_add_u32 {s(sSO)}, {s(sSO)}, 4096
    s_add_u32 {s(sCNT)}, {s(sCNT)}, 1
    s_cmp_lt_u32 {s(sCNT)}, 16
    s_cbranch_scc1 {Lm}
    ''')
    k(f'''
    s_lshl_b32 {s(sT+7)}, {s(sW)}, 2
    ''')
    for bl in range(4):
        k(f'v_add_u32 {v(T)}, {s(sT+7)}, {v(vQR+bl)}')
        k(f'ds_write_b32 {v(T)}, {v(M+bl)}')
    k('s_waitcnt lgkmcnt(0)')
    k('s_barrier')
    for bl in range(4):
        k(f'''
        ds_read_b128 {v(S,4)}, {v(vQR+bl)}
        v_max3_f32 {v(T)}, {v(S)}, {v(S+1)}, {v(S+2)}
        v_max_f32 {v(T)}, {v(T)}, {v(S+3)}
        v_mov_b32 {v(T+1)}, {v(T)}
        v_permlane32_swap_b32 {v(T)}, {v(T+1)}
        v_max_f32 {v(T)}, {v(T)}, {v(T+1)}
        v_sub_f32 {v(T)}, 0, {v(T)}
        v_and_b32 {v(T+1)}, 0xffff0000, {v(T)}
        v_sub_f32 {v(T)}, {v(T)}, {v(T+1)}
        v_and_b32 {v(T+2)}, 0xffff0000, {v(T)}
        v_sub_f32 {v(T)}, {v(T)}, {v(T+2)}
        v_lshrrev_b32 {v(T+1)}, 16, {v(T+1)}
        v_or_b32 {v(S+16+2*bl)}, {v(T+1)}, {v(T+2)}
        v_lshrrev_b32 {v(S+17+2*bl)}, 16, {v(T)}
        ''')
    Lo3, Lp3 = lbl('odd'), lbl('pd')
    k(f'''
    s_mov_b64 exec, {HI}
    s_bitcmp1_b32 {s(sH)}, 0
    s_cbranch_scc1 {Lo3}
    ''')
    for bl in range(4):
        k(f'v_mov_b32 {v(Q+8*bl+6)}, {v(S+16+2*bl)}')
        k(f'v_mov_b32 {v(Q+8*bl+7)}, {v(S+17+2*bl)}')
    k(f's_branch {Lp3}')
    k.label(Lo3)
    for bl in range(4):
        k(f'v_mov_b32 {v(Q+8*bl+4)}, {v(S+16+2*bl)}')
        k(f'v_mov_b32 {v(Q+8*bl+5)}, {v(S+17+2*bl)}')
    k.label(Lp3)
    k('s_mov_b64 exec, -1')
    k('s_barrier')
    kv_prologue()
    zero_acc()
    k('s_branch L_att_main')
    k.label('L_att_done')
    k.vmq = []; k.lgq = []
    stamp()


vHB = 248
vZ1 = 232
vL16 = 2

def flag_off(dst, base, line, idx):
    k(f"""
    s_lshl_b32 {s(dst)}, {s(line)}, 5
    s_add_u32 {s(dst)}, {s(dst)}, {s(idx)}
    s_lshl_b32 {s(dst)}, {s(dst)}, 2
    s_add_u32 {s(dst)}, {s(dst)}, {base}
    """)

def w128_dma_addr(vd, t):
    k(f"""
    v_lshrrev_b32 {v(t)}, 3, v1
    v_and_b32 {v(t+1)}, 7, v1
    v_and_b32 {v(vd)}, 6, {v(t)}
    v_xor_b32 {v(t+1)}, {v(t+1)}, {v(vd)}
    v_mul_u32_u24 {v(vd)}, 896, {v(t)}
    v_lshl_add_u32 {v(vd)}, {v(t+1)}, 4, {v(vd)}
    """)

def w128_dma(vd, sr, rows_per_wave, lds_base, sA, sB):
    k(f"""
    s_mul_i32 {s(sA)}, {s(sW)}, {rows_per_wave*896}
    s_lshl_b32 {s(sB)}, {s(sCG)}, 7
    s_add_u32 {s(sA)}, {s(sA)}, {s(sB)}
    s_mul_i32 {s(sB)}, {s(sW)}, {rows_per_wave*128}
    """)
    for j in range(rows_per_wave//8):
        k(f's_add_u32 m0, {s(sB)}, {lds_base + 1024*j}')
        if j: k(f's_add_u32 {s(sA)}, {s(sA)}, {8*896}')
        k(f'buffer_load_dwordx4 {v(vd)}, {srd(sr)}, {s(sA)} offen lds')

def red_q(x, y, t):
    k(f"""
    v_permlane16_swap_b32 {v(x)}, {v(y)}
    v_add_f32 {v(x)}, {v(x)}, {v(y)}
    v_mov_b32 {v(t)}, {v(x)}
    v_permlane32_swap_b32 {v(x)}, {v(t)}
    v_add_f32 {v(x)}, {v(x)}, {v(t)}
    """)

def gemm16(nfrag, rd, mf, ring, depth=4, group=2):
    for n in range(min(depth, nfrag)): rd(n, n % ring)
    n = 0
    while n < nfrag:
        g = min(group, nfrag - n)
        for j in range(g):
            if n + depth + j < nfrag: rd(n + depth + j, (n + depth + j) % ring)
        for j in reversed(range(g)):
            mf(n + j, (n + j) % ring)
        n += g

def p3():
    OF, ACC, XR, BR, AD = 16, 80, 96, 104, 144
    vD, vX, vP, T = 3, 4, 5, 160
    k(f's_cmp_eq_u32 {s(sCG)}, 7')
    k(f's_cbranch_scc1 L_p3_done')
    w128_dma_addr(vD, T)
    w128_dma(vD, WO_, 112, 0, sT+1, sT+2)
    tW = k.mark()
    sRB = sT+3
    k(f"""
    s_lshl_b32 {s(sRB)}, {s(sRG)}, 2
    s_add_u32 {s(sRB)}, {s(sRB)}, {s(sW)}
    v_and_b32 {v(T)}, 15, v1
    v_lshrrev_b32 {v(T+1)}, 4, v1
    v_mul_u32_u24 {v(vX)}, 896, {v(T)}
    v_lshl_add_u32 {v(vX)}, {v(T+1)}, 3, {v(vX)}
    s_mul_i32 {s(sT+4)}, {s(sRB)}, {16*896}
    s_lshl_b32 {s(sT+5)}, {s(sCG)}, 7
    s_add_u32 {s(sT+4)}, {s(sT+4)}, {s(sT+5)}
    """)
    for c in range(4):
        k(f'buffer_load_dwordx2 {v(XR+2*c,2)}, {v(vX)}, {srd(X_)}, {s(sT+4)} offen offset:{32*c}')
    k(f"""
    v_bfe_u32 {v(T+2)}, v1, 2, 2
    v_and_b32 {v(T+3)}, 3, v1
    v_and_b32 {v(T+4)}, 1, {v(T+1)}
    v_lshrrev_b32 {v(T+5)}, 1, {v(T+2)}
    v_lshl_add_u32 {v(T+5)}, {v(T+4)}, 1, {v(T+5)}
    v_lshrrev_b32 {v(T+6)}, 1, {v(T+1)}
    v_lshl_add_u32 {v(T+6)}, {v(T+6)}, 2, {v(T+4)}
    v_lshl_add_u32 {v(T+6)}, {v(T+6)}, 2, {v(T+2)}
    v_lshlrev_b32 {v(T+6)}, 7, {v(T+6)}
    v_lshl_add_u32 {v(T+6)}, {v(T+3)}, 3, {v(T+6)}
    v_mov_b32 {v(T+7)}, 1024
    v_cmp_eq_u32 vcc, 3, {v(T+1)}
    v_cndmask_b32 {v(T+7)}, {v(T+7)}, 0, vcc
    """)
    for c in range(4):
        k(f"""
        v_xor_b32 {v(T+8)}, {c}, {v(T+5)}
        v_lshl_add_u32 {v(AD+2*c)}, {v(T+8)}, 5, {v(T+6)}
        v_add_u32 {v(AD+2*c+1)}, {v(AD+2*c)}, {v(T+7)}
        """)
    k(f"""
    s_lshr_b32 {s(sT+5)}, {s(sRG)}, 1
    s_lshl_b32 {s(sT+5)}, {s(sT+5)}, 7
    s_add_u32 {s(sT+5)}, {s(sT+5)}, {WS_F2}
    v_lshl_add_u32 {v(vP)}, {v(T)}, 2, {s(sT+5)}
    s_lshl_b32 {s(sT+5)}, {s(sRB)}, 14
    s_add_u32 {s(sT+5)}, {s(sT+5)}, {WS_O}
    """)
    poll(vP, T+9)
    stamp()
    for hh in range(16):
        if hh and hh % 4 == 0: k(f's_add_u32 {s(sT+5)}, {s(sT+5)}, 4096')
        k(f'buffer_load_dwordx4 {v(OF+4*hh,4)}, {v(vL16)}, {srd(WS_)}, {s(sT+5)} offen offset:{1024*(hh%4)} sc1')
    k('s_barrier')
    def rd(n, slot):
        hh, c = divmod(n, 4)
        cc = c ^ (2*(hh & 1))
        for r in range(2):
            k(f'ds_read_b64_tr_b16 {v(BR+4*slot+2*r,2)}, {v(AD+2*cc+r)} offset:{hh*3584}')
    def mf(n, slot):
        hh, c = divmod(n, 4)
        C = '0' if hh == 0 else v(ACC+4*c, 4)
        k(f'v_mfma_f32_16x16x32_bf16 {v(ACC+4*c,4)}, {v(BR+4*slot,4)}, {v(OF+4*hh,4)}, {C}')
    gemm16(64, rd, mf, 8)
    F = 16
    for j in range(8):
        k(f'v_lshlrev_b32 {v(F+2*j)}, 16, {v(XR+j)}')
        k(f'v_and_b32 {v(F+2*j+1)}, 0xffff0000, {v(XR+j)}')
    for j in range(16): k(f'v_add_f32 {v(F+j)}, {v(F+j)}, {v(ACC+j)}')
    for j in range(8): k(f'v_cvt_pk_bf16_f32 {v(vHB+j)}, {v(F+2*j)}, {v(F+2*j+1)}')
    k(f"""
    s_mul_i32 {s(sT+5)}, {s(sRB)}, 14336
    s_lshl_b32 {s(sT+6)}, {s(sCG)}, 11
    s_add_u32 {s(sT+5)}, {s(sT+5)}, {s(sT+6)}
    s_add_u32 {s(sT+5)}, {s(sT+5)}, {WS_H}
    buffer_store_dwordx4 {v(vHB,4)}, {v(vL16)}, {srd(WS_)}, {s(sT+5)} offen sc1
    buffer_store_dwordx4 {v(vHB+4,4)}, {v(vL16)}, {srd(WS_)}, {s(sT+5)} offen offset:1024 sc1
    v_add_f32 {v(T+10)}, {v(F)}, {v(F+1)}
    v_mul_f32 {v(T+11)}, {v(F)}, {v(F)}
    v_fmac_f32 {v(T+11)}, {v(F+1)}, {v(F+1)}
    """)
    for j in range(2, 16):
        k(f'v_add_f32 {v(T+10)}, {v(T+10)}, {v(F+j)}')
        k(f'v_fmac_f32 {v(T+11)}, {v(F+j)}, {v(F+j)}')
    red_q(T+10, T+11, T+12)
    k(f"""
    v_lshlrev_b32 {v(T+11)}, 3, {v(T)}
    v_lshl_add_u32 {v(T+11)}, {v(T+4)}, 2, {v(T+11)}
    s_lshl_b32 {s(sT+5)}, {s(sRB)}, 10
    s_lshl_b32 {s(sT+6)}, {s(sCG)}, 7
    s_add_u32 {s(sT+5)}, {s(sT+5)}, {s(sT+6)}
    s_add_u32 {s(sT+5)}, {s(sT+5)}, {WS_HS}
    buffer_store_dword {v(T+10)}, {v(T+11)}, {srd(WS_)}, {s(sT+5)} offen sc1
    """)
    flag_off(sT+1, WS_F3, sRG, sCG)
    signal(sT+1, T+12)
    k.label('L_p3_done')
    k.vmq = []; k.lgq = []
    stamp()

def ln_finish(x, n, r, b, t):
    k(f"""
    v_mov_b32 {v(t)}, {v(x)}
    v_permlane16_swap_b32 {v(x)}, {v(t)}
    v_mul_f32 {v(x)}, {hx(fbits(1/n))}, {v(x)}
    v_mul_f32 {v(t)}, {hx(fbits(1/n))}, {v(t)}
    v_fma_f32 {v(t)}, -{v(x)}, {v(x)}, {v(t)}
    v_max_f32 {v(t)}, 0, {v(t)}
    v_add_f32 {v(t)}, {hx(fbits(1e-5))}, {v(t)}
    v_rsq_f32 {v(r)}, {v(t)}
    v_mul_f32 {v(b)}, {v(x)}, {v(r)}
    v_sub_f32 {v(b)}, 0, {v(b)}
    """)

GK1 = 2*0.7978845608028654*math.log2(math.e)
GK2 = GK1*0.044715
def gelu_pairs(regs, kc, t):
    B = 4
    for i0 in range(0, len(regs), B):
        batch = regs[i0:i0+B]
        for j, y in enumerate(batch): k(f'v_pk_mul_f32 {v(t+2*j,2)}, {v(y,2)}, {v(y,2)}')
        for j, y in enumerate(batch): k(f'v_pk_fma_f32 {v(t+2*j,2)}, {v(t+2*j,2)}, {v(kc,2)}, {v(kc,2)} op_sel:[0,0,1] op_sel_hi:[1,0,1]')
        for j, y in enumerate(batch): k(f'v_pk_mul_f32 {v(t+2*j,2)}, {v(t+2*j,2)}, {v(y,2)}')
        for j, y in enumerate(batch):
            k(f'v_exp_f32 {v(t+2*j)}, {v(t+2*j)}')
            k(f'v_exp_f32 {v(t+2*j+1)}, {v(t+2*j+1)}')
        for j, y in enumerate(batch): k(f'v_pk_add_f32 {v(t+2*j,2)}, {v(t+2*j,2)}, 1.0 op_sel_hi:[1,0]')
        for j, y in enumerate(batch):
            k(f'v_rcp_f32 {v(t+2*j)}, {v(t+2*j)}')
            k(f'v_rcp_f32 {v(t+2*j+1)}, {v(t+2*j+1)}')
        for j, y in enumerate(batch): k(f'v_pk_mul_f32 {v(y,2)}, {v(y,2)}, {v(t+2*j,2)}')

LDS_Z2 = 57344
def p4():
    HF, A2, A1, BR = 16, 72, 100, 128
    CS1, CS2, DA = 160, 188, 196
    R2, B2, R1, B1, KC = 204, 208, 212, 213, 214
    T = 216
    vP, vTR, vBP = 3, 4, 5
    sRB, sG, sL = sT+3, sT+4, sT+5
    for m in range(8):
        if m < 7:
            k(f's_add_u32 {s(sT+1)}, {s(sW)}, {4*m}')
        else:
            k(f's_and_b32 {s(sT+1)}, {s(sW)}, 1')
            k(f's_add_u32 {s(sT+1)}, {s(sT+1)}, 12')
        k(f"""
        s_lshl_b32 {s(sT+1)}, {s(sT+1)}, 6
        v_add_u32 {v(T)}, {s(sT+1)}, v1
        v_mul_u32_u24 {v(T+1)}, 4682, {v(T)}
        v_lshrrev_b32 {v(T+1)}, 16, {v(T+1)}
        v_mul_u32_u24 {v(T+2)}, 14, {v(T+1)}
        v_sub_u32 {v(T)}, {v(T)}, {v(T+2)}
        v_mul_u32_u24 {v(T+1)}, 3584, {v(T+1)}
        v_lshl_add_u32 {v(DA+m)}, {v(T)}, 4, {v(T+1)}
        """)
    k(f"""
    s_mul_i32 {s(sG)}, {s(sCG)}, 224
    s_lshl_b32 {s(sL)}, {s(sW)}, 10
    s_and_b32 {s(sT+6)}, {s(sW)}, 1
    s_lshl_b32 {s(sT+6)}, {s(sT+6)}, 10
    s_lshl_b32 {s(sRB)}, {s(sRG)}, 2
    s_add_u32 {s(sRB)}, {s(sRB)}, {s(sW)}
    """)
    def sb_dma(colbyte, row0, lds, half=False):
        k(f's_add_u32 {s(sT+7)}, {s(sG)}, {colbyte + row0*3584}')
        for m in range(3 if half else 7):
            k(f's_add_u32 m0, {s(sL)}, {lds + 4096*m}')
            k(f'buffer_load_dwordx4 {v(DA+m)}, {srd(WIN_)}, {s(sT+7)} offen lds')
        if half:
            k(f's_add_u32 m0, {s(sT+6)}, {lds + 12288}')
            k(f'buffer_load_dwordx4 {v(DA+7)}, {srd(WIN_)}, {s(sT+7)} offen lds')
    for sb in range(4): sb_dma(1792, 128*sb, LDS_Z2 + 28672*sb, half=(sb == 3))
    for sb in range(2): sb_dma(0, 128*sb, 28672*sb)
    k(f"""
    v_bfe_u32 {v(T)}, v1, 3, 2
    v_and_b32 {v(T+1)}, 7, v1
    v_lshlrev_b32 {v(T)}, 7, {v(T)}
    v_lshl_add_u32 {v(T)}, {v(T+1)}, 2, {v(T)}
    v_add_u32 {v(vP)}, {WS_F1 + 7*512}, {v(T)}
    """)
    poll(vP, T)
    k(f"""
    v_and_b32 {v(T)}, 15, v1
    v_lshrrev_b32 {v(T+1)}, 4, v1
    v_lshlrev_b32 {v(T+2)}, 2, {v(T)}
    v_lshlrev_b32 {v(T+3)}, 4, {v(T+1)}
    s_mul_i32 {s(sT+7)}, {s(sCG)}, 448
    s_add_u32 {s(sT+7)}, {s(sT+7)}, {WS_CS}
    """)
    for cb in range(7):
        k(f'buffer_load_dword {v(CS2+cb)}, {v(T+2)}, {srd(WS_)}, {s(sT+7)} offen offset:{3584 + 64*cb} sc1')
        k(f'buffer_load_dwordx4 {v(CS1+4*cb,4)}, {v(T+3)}, {srd(WS_)}, {s(sT+7)} offen offset:{64*cb} sc1')
    k(f"""
    v_bfe_u32 {v(T+4)}, v1, 2, 2
    v_and_b32 {v(T+5)}, 3, v1
    v_lshl_add_u32 {v(T+4)}, {v(T+1)}, 2, {v(T+4)}
    v_mul_u32_u24 {v(vTR)}, 224, {v(T+4)}
    v_lshl_add_u32 {v(vTR)}, {v(T+5)}, 3, {v(vTR)}
    v_add_u32 {v(vTR+2)}, {LDS_Z2}, {v(vTR)}
    v_add_u32 {v(vTR+3)}, {LDS_Z2 + 57344}, {v(vTR)}
    v_mov_b32 {v(vBP)}, {v(T+3)}
    v_mov_b32 {v(KC)}, {hx(fbits(-GK2))}
    v_mov_b32 {v(KC+1)}, {hx(fbits(-GK1))}
    v_min_u32 {v(T+4)}, 6, {v(T)}
    s_lshl_b32 {s(sT+7)}, {s(sRG)}, 7
    s_add_u32 {s(sT+7)}, {s(sT+7)}, {WS_F3}
    v_lshl_add_u32 {v(vP)}, {v(T+4)}, 2, {s(sT+7)}
    v_lshlrev_b32 {v(8)}, 3, {v(T)}
    v_lshl_add_u32 {v(8)}, {v(T+1)}, 7, {v(8)}
    v_add_u32 {v(9)}, 512, {v(8)}
    v_mov_b32 {v(T+4)}, {hx(OOB)}
    v_cmp_eq_u32 vcc, 3, {v(T+1)}
    v_cndmask_b32 {v(9)}, {v(9)}, {v(T+4)}, vcc
    s_lshl_b32 {s(sT+8)}, {s(sRB)}, 10
    s_add_u32 {s(sT+8)}, {s(sT+8)}, {WS_HS}
    s_mul_i32 {s(sT+9)}, {s(sRB)}, 14336
    s_add_u32 {s(sT+9)}, {s(sT+9)}, {WS_H}
    """)
    poll(vP, T+4)
    stamp()
    k(f'buffer_load_dwordx2 {v(T+4,2)}, v8, {srd(WS_)}, {s(sT+8)} offen sc1')
    k(f'buffer_load_dwordx2 {v(T+6,2)}, v9, {srd(WS_)}, {s(sT+8)} offen sc1')
    for ks in range(14):
        if ks and ks % 4 == 0: k(f's_add_u32 {s(sT+9)}, {s(sT+9)}, 4096')
        k(f'buffer_load_dwordx4 {v(HF+4*ks,4)}, {v(vL16)}, {srd(WS_)}, {s(sT+9)} offen offset:{1024*(ks%4)} sc1')
    k('s_barrier')
    k(f'v_add_f32 {v(T+4)}, {v(T+4)}, {v(T+6)}')
    k(f'v_add_f32 {v(T+5)}, {v(T+5)}, {v(T+7)}')
    red_q(T+4, T+5, T+6)
    ln_finish(T+4, 448, R1, B1, T+5)
    def to_tok4(r, b):
        for i in range(4):
            k(f'ds_bpermute_b32 {v(R2+i)}, {v(vBP)}, {v(r)} offset:{4*i}')
            k(f'ds_bpermute_b32 {v(B2+i)}, {v(vBP)}, {v(b)} offset:{4*i}')
    to_tok4(R1, B1)
    def mk(base_lo, base_hi, split, acc, swap):
        def rd(n, slot):
            ks, cb = divmod(n, 7)
            ad, o = (base_lo, ks*7168) if ks < split else (base_hi, (ks-split)*7168)
            for r in range(2):
                k(f'ds_read_b64_tr_b16 {v(BR+4*slot+2*r,2)}, {v(ad)} offset:{o + r*3584 + cb*32}')
        def mf(n, slot):
            ks, cb = divmod(n, 7)
            C = '0' if ks == 0 else v(acc+4*cb, 4)
            W, H = v(BR+4*slot, 4), v(HF+4*ks, 4)
            k(f'v_mfma_f32_16x16x32_bf16 {v(acc+4*cb,4)}, ' + (f'{W}, {H}' if swap else f'{H}, {W}') + f', {C}')
        return rd, mf
    rd, mf = mk(vTR+2, vTR+3, 8, A2, False)
    gemm16(98, rd, mf, 8)
    k('s_barrier')
    sb_dma(0, 256, LDS_Z2); sb_dma(0, 384, LDS_Z2 + 28672, half=True)
    tB = k.mark()
    stamp()
    for cb in range(7):
        for i in range(0, 4, 2):
            y = A2 + 4*cb + i
            k(f'v_pk_mul_f32 {v(T+i,2)}, {v(B2+i,2)}, {v(CS2+(cb & ~1),2)} ' + ('op_sel:[0,1] op_sel_hi:[1,1]' if cb & 1 else 'op_sel_hi:[1,0]'))
        for i in range(0, 4, 2):
            y = A2 + 4*cb + i
            k(f'v_pk_fma_f32 {v(y,2)}, {v(y,2)}, {v(R2+i,2)}, {v(T+i,2)}')
    gelu_pairs([A2 + 2*j for j in range(14)], KC, T)
    SS, SQ = T, T+4
    for i in range(0, 4, 2):
        k(f'v_pk_add_f32 {v(SS+i,2)}, {v(A2+i,2)}, {v(A2+4+i,2)}')
        k(f'v_pk_mul_f32 {v(SQ+i,2)}, {v(A2+i,2)}, {v(A2+i,2)}')
    for cb in range(1, 7):
        for i in range(0, 4, 2):
            if cb > 1: k(f'v_pk_add_f32 {v(SS+i,2)}, {v(SS+i,2)}, {v(A2+4*cb+i,2)}')
            k(f'v_pk_fma_f32 {v(SQ+i,2)}, {v(A2+4*cb+i,2)}, {v(A2+4*cb+i,2)}, {v(SQ+i,2)}')
    for sh in (8, 4, 2, 1):
        for j in range(8):
            k(f'v_add_f32_dpp {v(T+j)}, {v(T+j)}, {v(T+j)} row_ror:{sh} row_mask:0xf bank_mask:0xf')
    k(f"""
    v_and_b32 {v(T+8)}, 15, v1
    v_lshrrev_b32 {v(T+9)}, 4, v1
    """)
    for i in range(1, 4):
        k(f"""
        v_cmp_eq_u32 vcc, {i}, {v(T+8)}
        v_cndmask_b32 {v(SS)}, {v(SS)}, {v(SS+i)}, vcc
        v_cndmask_b32 {v(SQ)}, {v(SQ)}, {v(SQ+i)}, vcc
        """)
    k(f"""
    v_mov_b32 {v(T+1)}, {s(sNONCE)}
    v_mov_b32 {v(T+2)}, {v(SQ)}
    v_mov_b32 {v(T+3)}, {s(sNONCE)}
    v_lshl_add_u32 {v(T+10)}, {v(T+9)}, 2, {v(T+8)}
    v_lshlrev_b32 {v(T+10)}, 4, {v(T+10)}
    v_mov_b32 {v(T+11)}, {hx(OOB)}
    v_cmp_gt_u32 vcc, 4, {v(T+8)}
    v_cndmask_b32 {v(T+10)}, {v(T+11)}, {v(T+10)}, vcc
    s_lshl_b32 {s(sT+8)}, {s(sRG)}, 13
    s_lshl_b32 {s(sT+9)}, {s(sW)}, 8
    s_add_u32 {s(sT+8)}, {s(sT+8)}, {s(sT+9)}
    s_add_u32 {s(sT+8)}, {s(sT+8)}, {WS_ST}
    s_lshl_b32 {s(sT+9)}, {s(sCG)}, 10
    s_add_u32 {s(sT+9)}, {s(sT+9)}, {s(sT+8)}
    buffer_store_dwordx4 {v(T,4)}, {v(T+10)}, {srd(WS_)}, {s(sT+9)} offen sc1
    v_lshlrev_b32 v8, 4, {v(T+8)}
    v_lshl_add_u32 v8, {v(T+9)}, 10, v8
    """)
    k.wait_vm(tB)
    k('s_barrier')
    stamp()
    rd, mf = mk(vTR, vTR+2, 8, A1, True)
    gemm16(98, rd, mf, 8)
    stamp()
    L, D = lbl('st'), lbl('std')
    k.drain()
    k(f's_mov_b32 {s(sT)}, 0')
    k(f's_add_u32 {s(sT+9)}, {s(sT+8)}, 4096')
    k.label(L)
    k(f"""
    buffer_load_dwordx4 {v(T,4)}, v8, {srd(WS_)}, {s(sT+8)} offen sc1
    buffer_load_dwordx4 {v(T+4,4)}, v8, {srd(WS_)}, {s(sT+9)} offen sc1
    s_add_u32 {s(sT)}, {s(sT)}, 1
    s_cmp_gt_u32 {s(sT)}, 0x80000
    s_cbranch_scc1 {D}
    s_waitcnt vmcnt(0)
    v_xor_b32 {v(T+8)}, {s(sNONCE)}, {v(T+1)}
    v_xor_b32 {v(T+9)}, {s(sNONCE)}, {v(T+3)}
    v_xor_b32 {v(T+10)}, {s(sNONCE)}, {v(T+5)}
    v_xor_b32 {v(T+11)}, {s(sNONCE)}, {v(T+7)}
    v_or3_b32 {v(T+8)}, {v(T+8)}, {v(T+9)}, {v(T+10)}
    v_or_b32 {v(T+8)}, {v(T+8)}, {v(T+11)}
    v_cmp_ne_u32 vcc, 0, {v(T+8)}
    s_cbranch_vccnz {L}
    """)
    k.label(D)
    k('s_waitcnt vmcnt(0)')
    k(f'v_add_f32 {v(T)}, {v(T)}, {v(T+4)}')
    k(f'v_add_f32 {v(T+2)}, {v(T+2)}, {v(T+6)}')
    red_q(T, T+2, T+1)
    ln_finish(T, 896, T+4, T+5, T+1)
    to_tok4(T+4, T+5)
    PK = 16
    for cb in range(7):
        for i in range(0, 4, 2):
            y = A2 + 4*cb + i
            k(f'v_pk_fma_f32 {v(y,2)}, {v(y,2)}, {v(R2+i,2)}, {v(B2+i,2)}')
    for j in range(14): k(f'v_cvt_pk_bf16_f32 {v(PK+j)}, {v(A2+2*j)}, {v(A2+2*j+1)}')
    k(f"""
    v_and_b32 {v(T)}, 15, v1
    v_bfe_u32 {v(T+1)}, v1, 4, 1
    v_lshrrev_b32 {v(T+2)}, 5, v1
    v_lshlrev_b32 {v(T)}, 4, {v(T)}
    v_lshl_add_u32 {v(T)}, {v(T+2)}, 8, {v(T)}
    v_lshl_add_u32 {v(T+3)}, {v(T+1)}, 3, {v(T)}
    v_lshl_add_u32 {v(T)}, {v(T+1)}, 10, {v(T)}
    s_lshl_b32 {s(sT+8)}, {s(sCG)}, 6
    s_lshr_b32 {s(sT+9)}, {s(sRB)}, 1
    s_add_u32 {s(sT+8)}, {s(sT+8)}, {s(sT+9)}
    s_mul_i32 {s(sT+8)}, {s(sT+8)}, 7168
    s_and_b32 {s(sT+9)}, {s(sRB)}, 1
    s_lshl_b32 {s(sT+9)}, {s(sT+9)}, 9
    s_add_u32 {s(sT+8)}, {s(sT+8)}, {s(sT+9)}
    s_add_u32 {s(sT+8)}, {s(sT+8)}, {WS_Z}
    s_add_u32 {s(sT+9)}, {s(sT+8)}, 4096
    """)
    for p in range(3):
        k(f'v_permlane16_swap_b32 {v(PK+4*p)}, {v(PK+4*p+2)}')
        k(f'v_permlane16_swap_b32 {v(PK+4*p+1)}, {v(PK+4*p+3)}')
        so, off = (sT+8, 2048*p) if p < 2 else (sT+9, 0)
        k(f'buffer_store_dwordx4 {v(PK+4*p,4)}, {v(T)}, {srd(WS_)}, {s(so)} offen offset:{off} sc1')
    k(f'buffer_store_dwordx2 {v(PK+12,2)}, {v(T+3)}, {srd(WS_)}, {s(sT+9)} offen offset:2048 sc1')
    k(f"""
    s_bfe_u32 {s(sT+2)}, {s(sRG)}, 0x20001
    s_lshl_b32 {s(sT+7)}, {s(sCG)}, 2
    s_add_u32 {s(sT+2)}, {s(sT+2)}, {s(sT+7)}
    s_lshr_b32 {s(sT+7)}, {s(sRG)}, 3
    s_lshl_b32 {s(sT+7)}, {s(sT+7)}, 1
    s_and_b32 {s(sT+8)}, {s(sRG)}, 1
    s_add_u32 {s(sT+7)}, {s(sT+7)}, {s(sT+8)}
    """)
    flag_off(sT+1, WS_F5, sT+2, sT+7)
    signal(sT+1, T+4)
    stamp()
    for j in range(14):
        y = A1 + 2*j
        k(f'v_pk_mul_f32 {v(CS1+2*j,2)}, {v(CS1+2*j,2)}, {v(R1,2)} op_sel:[0,1] op_sel_hi:[1,1]')
        k(f'v_pk_fma_f32 {v(y,2)}, {v(y,2)}, {v(R1,2)}, {v(CS1+2*j,2)} op_sel_hi:[1,0,1]')
    gelu_pairs([A1 + 2*j for j in range(14)], KC, T)
    for j in range(14): k(f'v_cvt_pk_bf16_f32 {v(vZ1+j)}, {v(A1+2*j)}, {v(A1+2*j+1)}')

def p5():
    ACC, ZB = 16, 128
    NB = 3
    DA, RA, T = 4, 8, 212
    vP, vB = 3, 246
    sRB, sG, sL = sT+3, sT+4, sT+5
    k(f"""
    v_lshrrev_b32 {v(T)}, 4, v1
    v_and_b32 {v(T+1)}, 15, v1
    v_lshlrev_b32 {v(T+2)}, 12, {v(T)}
    v_xor_b32 {v(T+3)}, {v(T)}, {v(T+1)}
    v_lshrrev_b32 {v(T+4)}, 2, {v(T+1)}
    v_and_b32 {v(T+5)}, 3, {v(T+1)}
    v_lshlrev_b32 {v(T+6)}, 12, {v(T+4)}
    v_lshl_add_u32 {v(T+6)}, {v(T+5)}, 8, {v(T+6)}
    s_lshl_b32 {s(sL)}, {s(sW)}, 15
    v_add_u32 {v(T+6)}, {s(sL)}, {v(T+6)}
    s_lshl_b32 {s(sRB)}, {s(sRG)}, 2
    s_add_u32 {s(sRB)}, {s(sRB)}, {s(sW)}
    s_lshl_b32 {s(sT+6)}, {s(sRB)}, 5
    v_lshlrev_b32 {v(T+7)}, 1, {v(T+1)}
    buffer_load_ushort {v(vB)}, {v(T+7)}, {srd(BSP_)}, {s(sT+6)} offen
    """)
    for j in range(4):
        k(f"""
        v_xor_b32 {v(T+7)}, {4*j}, {v(T+3)}
        v_lshl_add_u32 {v(DA+j)}, {v(T+7)}, 4, {v(T+2)}
        v_lshl_add_u32 {v(RA+j)}, {v(T+7)}, 4, {v(T+6)}
        """)
    def wsp_half(hf):
        for rl2 in range(2):
            rl = 2*hf + rl2
            k(f"""
            s_add_u32 {s(sT+6)}, {s(sW)}, {rl+1}
            s_and_b32 {s(sT+6)}, {s(sT+6)}, 3
            s_lshl_b32 {s(sT+7)}, {s(sRG)}, 2
            s_add_u32 {s(sT+6)}, {s(sT+6)}, {s(sT+7)}
            s_lshl_b32 {s(sT+6)}, {s(sT+6)}, 16
            s_lshl_b32 {s(sT+7)}, {s(sW)}, 8
            s_add_u32 {s(sG)}, {s(sT+6)}, {s(sT+7)}
            """)
            for a4 in range(4):
                k(f's_add_u32 m0, {s(sL)}, {rl2*16384 + a4*4096}')
                if a4: k(f's_add_u32 {s(sG)}, {s(sG)}, 16384')
                for i in range(4):
                    k(f'buffer_load_dwordx4 {v(DA+a4)}, {srd(WSP_)}, {s(sG)} offen offset:{1024*i} lds')
        k('s_waitcnt vmcnt(0)')
        for rl2 in range(2):
            rl = 2*hf + rl2
            for i in range(4):
                for ks4 in range(4):
                    k(f'ds_read_b128 {a(((4*i+ks4)*4+rl)*4,4)}, {v(RA+ks4)} offset:{rl2*16384 + i*1024}')
        k('s_waitcnt lgkmcnt(0)')
    k('s_barrier')
    wsp_half(0); wsp_half(1)
    k(f"""
    s_lshl_b32 {s(sT+6)}, {s(sCG)}, 2
    s_add_u32 {s(sT+6)}, {s(sT+6)}, {s(sW)}
    s_lshl_b32 {s(sT+6)}, {s(sT+6)}, 7
    s_add_u32 {s(sT+6)}, {s(sT+6)}, {WS_F5}
    v_and_b32 {v(T)}, 7, v1
    v_lshl_add_u32 {v(vP)}, {v(T)}, 2, {s(sT+6)}
    s_lshl_b32 {s(sT+6)}, {s(sCG)}, 6
    s_lshl_b32 {s(sT+7)}, {s(sW)}, 2
    s_add_u32 {s(sT+6)}, {s(sT+6)}, {s(sT+7)}
    s_mul_i32 {s(sG)}, {s(sT+6)}, 7168
    s_add_u32 {s(sG)}, {s(sG)}, {WS_Z}
    """)
    poll(vP, T)
    stamp()
    def ldz(st):
        i, ks4 = divmod(st, 4)
        o = (16*i + ks4)*7168
        k(f's_add_u32 {s(sT+6)}, {s(sG)}, {o}')
        k(f's_add_u32 {s(sT+7)}, {s(sG)}, {o + 4096}')
        for cb in range(7):
            so, off = (sT+6, 1024*cb) if cb < 4 else (sT+7, 1024*(cb-4))
            k(f'buffer_load_dwordx4 {v(ZB+28*(st%NB)+4*cb,4)}, {v(vL16)}, {srd(WS_)}, {s(so)} offen offset:{off} sc1')
    for st in range(NB): ldz(st)
    for st in range(16):
        for cb in range(7):
            for rl in range(4):
                acc = v(ACC + (rl*7+cb)*4, 4)
                C = '0' if st == 0 else acc
                k(f'v_mfma_f32_16x16x32_bf16 {acc}, {v(ZB+28*(st%NB)+4*cb,4)}, {a((st*4+rl)*4,4)}, {C}')
        if st + NB < 16: ldz(st + NB)
    stamp()
    bump_nonce(T+8)
    k('s_barrier')
    for rl in range(3):
        k(f"""
        s_add_u32 {s(sT+6)}, {s(sW)}, {rl+1}
        s_and_b32 {s(sT+6)}, {s(sT+6)}, 3
        s_mul_i32 {s(sT+6)}, {s(sT+6)}, 21504
        s_add_u32 {s(sT+6)}, {s(sT+6)}, {rl*7168}
        v_add_u32 {v(T+rl)}, {s(sT+6)}, {v(vL16)}
        """)
        for cb in range(7):
            k(f'ds_write_b128 {v(T+rl)}, {v(ACC+(rl*7+cb)*4,4)} offset:{1024*cb}')
    k(f"""
    s_mul_i32 {s(sT+6)}, {s(sW)}, 21504
    v_add_u32 {v(T+3)}, {s(sT+6)}, {v(vL16)}
    v_lshlrev_b32 {v(vB)}, 16, {v(vB)}
    s_waitcnt lgkmcnt(0)
    s_barrier
    """)
    for j in range(21): k(f'ds_read_b128 {v(ZB+4*j,4)}, {v(T+3)} offset:{1024*j}')
    G = ACC + 84
    for j in range(14): k(f'v_pk_add_f32 {v(G+2*j,2)}, {v(G+2*j,2)}, {v(vB,2)} op_sel_hi:[1,0]')
    for rl in range(3):
        for j in range(14): k(f'v_pk_add_f32 {v(G+2*j,2)}, {v(G+2*j,2)}, {v(ZB+28*rl+2*j,2)}')
    for j in range(14):
        k(f'v_lshlrev_b32 {v(ACC+2*j)}, 16, {v(vZ1+j)}')
        k(f'v_and_b32 {v(ACC+2*j+1)}, 0xffff0000, {v(vZ1+j)}')
    for j in range(14): k(f'v_pk_mul_f32 {v(G+2*j,2)}, {v(G+2*j,2)}, {v(ACC+2*j,2)}')
    for j in range(14): k(f'v_cvt_pk_bf16_f32 {v(ACC+j)}, {v(G+2*j)}, {v(G+2*j+1)}')
    k(f"""
    s_mul_i32 {s(sT+6)}, {s(sRB)}, 28672
    s_mul_i32 {s(sT+7)}, {s(sCG)}, 3584
    s_add_u32 {s(sT+6)}, {s(sT+6)}, {s(sT+7)}
    s_add_u32 {s(sT+6)}, {s(sT+6)}, {WS_U}
    v_lshlrev_b32 {v(T)}, 3, v1
    """)
    for p in range(3):
        k(f'buffer_store_dwordx4 {v(ACC+4*p,4)}, {v(vL16)}, {srd(WS_)}, {s(sT+6)} offen offset:{1024*p} sc1')
    k(f'buffer_store_dwordx2 {v(ACC+12,2)}, {v(T)}, {srd(WS_)}, {s(sT+6)} offen offset:3072 sc1')
    flag_off(sT+1, WS_F6, sRG, sCG)
    signal(sT+1, T+4)
    stamp()

def p6():
    UF, ACC, BR, AD, T = 16, 128, 144, 176, 192
    vD, vP, vL8 = 3, 4, 5
    sRB = sT+3
    k(f's_cmp_eq_u32 {s(sCG)}, 7')
    k(f's_cbranch_scc1 L_fin')
    w128_dma_addr(vD, T)
    w128_dma(vD, WOUT_, 224, 0, sT+1, sT+2)
    k(f"""
    s_lshl_b32 {s(sRB)}, {s(sRG)}, 2
    s_add_u32 {s(sRB)}, {s(sRB)}, {s(sW)}
    v_lshrrev_b32 {v(T+1)}, 4, v1
    v_bfe_u32 {v(T+2)}, v1, 2, 2
    v_and_b32 {v(T+3)}, 3, v1
    v_and_b32 {v(T+4)}, 1, {v(T+1)}
    v_lshrrev_b32 {v(T+5)}, 1, {v(T+2)}
    v_lshl_add_u32 {v(T+5)}, {v(T+4)}, 1, {v(T+5)}
    v_lshl_add_u32 {v(T+6)}, {v(T+1)}, 2, {v(T+2)}
    v_lshlrev_b32 {v(T+6)}, 7, {v(T+6)}
    v_lshl_add_u32 {v(T+6)}, {v(T+3)}, 3, {v(T+6)}
    v_lshlrev_b32 {v(vL8)}, 3, v1
    """)
    for c in range(4):
        k(f"""
        v_xor_b32 {v(T+8)}, {c}, {v(T+5)}
        v_lshl_add_u32 {v(AD+c)}, {v(T+8)}, 5, {v(T+6)}
        v_add_u32 {v(AD+4+c)}, 57344, {v(AD+c)}
        """)
    k(f"""
    s_lshl_b32 {s(sT+5)}, {s(sRG)}, 7
    s_add_u32 {s(sT+5)}, {s(sT+5)}, {WS_F6}
    v_and_b32 {v(T)}, 7, v1
    v_lshl_add_u32 {v(vP)}, {v(T)}, 2, {s(sT+5)}
    s_mul_i32 {s(sT+5)}, {s(sRB)}, 28672
    s_add_u32 {s(sT+5)}, {s(sT+5)}, {WS_U}
    """)
    poll(vP, T+9)
    stamp()
    steps = []
    for m in range(4):
        for e in range(2):
            cgp = 2*m + e
            for p in range(3): steps.append((112*cgp + 32*p, 112*cgp + 32*p + 16))
            if e == 0:
                for p in range(3):
                    k(f'buffer_load_dwordx4 {v(UF+4*(7*m+p),4)}, {v(vL16)}, {srd(WS_)}, {s(sT+5)} offen offset:{1024*p} sc1')
                k(f'buffer_load_dwordx2 {v(UF+4*(7*m+6),2)}, {v(vL8)}, {srd(WS_)}, {s(sT+5)} offen offset:3072 sc1')
            else:
                for p in range(3):
                    k(f'buffer_load_dwordx4 {v(UF+4*(7*m+3+p),4)}, {v(vL16)}, {srd(WS_)}, {s(sT+5)} offen offset:{1024*p} sc1')
                k(f'buffer_load_dwordx2 {v(UF+4*(7*m+6)+2,2)}, {v(vL8)}, {srd(WS_)}, {s(sT+5)} offen offset:3072 sc1')
            k(f's_add_u32 {s(sT+5)}, {s(sT+5)}, 3584')
        steps.append((224*m + 96, 224*m + 208))
    k('s_barrier')
    def rd(n, slot):
        ks, c = divmod(n, 4)
        for r in range(2):
            o = steps[ks][r]*128
            ad = AD + c
            if o >= 57344: o -= 57344; ad += 4
            k(f'ds_read_b64_tr_b16 {v(BR+4*slot+2*r,2)}, {v(ad)} offset:{o}')
    def mf(n, slot):
        ks, c = divmod(n, 4)
        C = '0' if ks == 0 else v(ACC+4*c, 4)
        k(f'v_mfma_f32_16x16x32_bf16 {v(ACC+4*c,4)}, {v(BR+4*slot,4)}, {v(UF+4*ks,4)}, {C}')
    gemm16(112, rd, mf, 8)
    F = 16
    for j in range(8):
        k(f'v_lshlrev_b32 {v(F+2*j)}, 16, {v(vHB+j)}')
        k(f'v_and_b32 {v(F+2*j+1)}, 0xffff0000, {v(vHB+j)}')
    k(f"""
    v_and_b32 {v(T)}, 15, v1
    v_mul_u32_u24 {v(T)}, 896, {v(T)}
    v_lshl_add_u32 {v(T)}, {v(T+4)}, 5, {v(T)}
    v_lshrrev_b32 {v(T+1)}, 5, v1
    v_lshl_add_u32 {v(T)}, {v(T+1)}, 4, {v(T)}
    s_mul_i32 {s(sT+5)}, {s(sRB)}, {16*896}
    s_lshl_b32 {s(sT+6)}, {s(sCG)}, 7
    s_add_u32 {s(sT+5)}, {s(sT+5)}, {s(sT+6)}
    """)
    for j in range(16): k(f'v_add_f32 {v(F+j)}, {v(F+j)}, {v(ACC+j)}')
    for j in range(8): k(f'v_cvt_pk_bf16_f32 {v(40+j)}, {v(F+2*j)}, {v(F+2*j+1)}')
    for p in range(2):
        k(f'v_permlane16_swap_b32 {v(40+4*p)}, {v(42+4*p)}')
        k(f'v_permlane16_swap_b32 {v(41+4*p)}, {v(43+4*p)}')
        k(f'buffer_store_dwordx4 {v(40+4*p,4)}, {v(T)}, {srd(OUT_)}, {s(sT+5)} offen offset:{64*p}')
```

```python
import sys, math, struct, os
from asmdsl import Asm, v, a, s

NAME = "sequential_preLN__softmax_full_mha__mixer_gmlp__prompt"
OPT = dict(stop=99, stamps=0, attmap='head', force_fallback=0)
for arg in sys.argv[2:]:
    k_, v_ = arg.split('=')
    OPT[k_] = int(v_) if v_.lstrip('-').isdigit() else v_

def fbits(x): return struct.unpack('<I', struct.pack('<f', x))[0]
def hx(x): return '0x%x' % (x & 0xffffffff)

WS_N0   = 0
WS_F1   = 0x1000
WS_F2   = 0x2000
WS_F3   = 0x3000
WS_F5   = 0x4000
WS_F6   = 0x5000
WS_CS   = 0x8000
WS_STAMP= 0x10000
WS_ST   = 0x40000
WS_HS   = 0x80000
WS_Q    = 0x100000
WS_KV   = 0x500000
WS_O    = 0x900000
WS_H    = 0xB00000
WS_Z    = 0xD00000
WS_U    = 0x1100000
WS_SIZE = 0x1500000
OOB     = 0x40000000

X_, WQKV_, WO_, WIN_, WSP_, BSP_, WOUT_, OUT_, WS_ = 4, 8, 12, 16, 20, 24, 28, 32, 36
sW, sRG, sCG, sH, sI, sNONCE, sN0 = 40, 41, 42, 43, 44, 45, 46
sT = 48
sM = 64
sSTAMP = 72
def srd(b): return s(b, 4)

k = Asm()
nstamp = [0]
def stamp():
    if OPT['stamps']:
        n = nstamp[0]; nstamp[0] += 1
        assert n < 14
        k.auto = False
        k.raw_stamp = True
        from asmdsl import Ins
        k.raw(Ins('s_memtime ' + s(sSTAMP + 2*n, 2)))
        k.smem |= {('s', 'stampdummy')}
        k.auto = True

uid = [0]
def lbl(p):
    uid[0] += 1
    return 'L_%s_%d' % (p, uid[0])

HI = s(sM, 2)

def poll(vaddr, vtmp, sleep=0):
    L, D = lbl('poll'), lbl('polld')
    k.drain()
    k(f's_mov_b32 {s(sT)}, 0')
    k.label(L)
    k(f'buffer_load_dword {v(vtmp)}, {v(vaddr)}, {srd(WS_)}, 0 offen sc1')
    k(f's_add_u32 {s(sT)}, {s(sT)}, 1')
    k(f's_cmp_gt_u32 {s(sT)}, 0x80000')
    k(f's_cbranch_scc1 {D}')
    k(f'v_cmp_ne_u32 vcc, {s(sNONCE)}, {v(vtmp)}')
    if sleep:
        k(f's_cbranch_vccz {D}')
        k(f's_sleep {sleep}')
        k(f's_branch {L}')
    else:
        k(f's_cbranch_vccnz {L}')
    k.label(D)
    k('s_waitcnt vmcnt(0)')

def signal(soff, vtmp):
    L = lbl('sig')
    k('s_waitcnt vmcnt(0)')
    k('s_barrier')
    k(f's_cmp_lg_u32 {s(sW)}, 0')
    k(f's_cbranch_scc1 {L}')
    k(f'v_mov_b32 {v(vtmp)}, {s(sNONCE)}')
    k(f'v_mov_b32 {v(vtmp+1)}, 0')
    k('s_mov_b64 exec, 1')
    k.auto = False
    k(f'buffer_store_dword {v(vtmp)}, {v(vtmp+1)}, {srd(WS_)}, {s(soff)} offen sc1')
    k.vmq.pop()
    k.auto = True
    k('s_mov_b64 exec, -1')
    k.label(L)

def prologue():
    k(f's_cmp_ge_u32 s2, 256')
    k(f's_cbranch_scc1 L_end')
    for base, off in ((X_, 0), (WQKV_, 8), (WS_, 80), (WIN_, 32), (WO_, 16), (WSP_, 40), (BSP_, 48), (WOUT_, 56), (OUT_, 64)):
        k(f's_load_dwordx2 {s(base, 2)}, s[0:1], {off}')
    if OPT['stamps']:
        k(f's_memrealtime {s(100, 2)}')
    stamp()
    k.auto = False
    for base, size in ((X_, 2048*896), (WQKV_, 448*2688), (WS_, WS_SIZE), (WIN_, 448*3584), (WO_, 448*896),
                       (WSP_, 2048*4096), (BSP_, 4096), (WOUT_, 896*896), (OUT_, 2048*896)):
        k(f's_mov_b32 {s(base+2)}, {hx(size)}')
        k(f's_mov_b32 {s(base+3)}, 0x20000')
    k.auto = True
    k(f'''
    v_lshrrev_b32 v2, 6, v0
    v_and_b32 v1, 63, v0
    v_readfirstlane_b32 {s(sW)}, v2
    s_and_b32 {s(sT)}, s2, 7
    s_lshr_b32 {s(sT+1)}, s2, 3
    s_lshl_b32 {s(sRG)}, {s(sT)}, 2
    s_lshr_b32 {s(sT+2)}, {s(sT+1)}, 3
    s_add_u32 {s(sRG)}, {s(sRG)}, {s(sT+2)}
    s_and_b32 {s(sCG)}, {s(sT+1)}, 7
    s_mov_b32 {s(sM)}, 0
    s_mov_b32 {s(sM+1)}, -1
    ''')
    if OPT['attmap'] == 'head':
        k(f'''
        s_lshl_b32 {s(sH)}, {s(sT)}, 1
        s_lshr_b32 {s(sT+2)}, {s(sT+1)}, 4
        s_add_u32 {s(sH)}, {s(sH)}, {s(sT+2)}
        s_and_b32 {s(sI)}, {s(sT+1)}, 15
        ''')
    else:
        k(f'''
        s_lshl_b32 {s(sI)}, {s(sT)}, 1
        s_lshr_b32 {s(sT+2)}, {s(sT+1)}, 4
        s_add_u32 {s(sI)}, {s(sI)}, {s(sT+2)}
        s_and_b32 {s(sH)}, {s(sT+1)}, 15
        ''')

def code_prefetch(vt):
    L = lbl('pc')
    k(f'''
    s_getpc_b64 {s(sT+4, 2)}
    {L}:
    s_sub_u32 {s(sT+4)}, {s(sT+4)}, {L}-{NAME}_kernel
    s_subb_u32 {s(sT+5)}, {s(sT+5)}, 0
    v_lshlrev_b32 {v(vt)}, 7, v0
    v_min_u32 {v(vt)}, L_end-{NAME}_kernel, {v(vt)}
    global_load_dword {v(vt+1)}, {v(vt)}, {s(sT+4, 2)}
    v_add_u32 {v(vt)}, 0x8000, {v(vt)}
    v_min_u32 {v(vt)}, L_end-{NAME}_kernel, {v(vt)}
    global_load_dword {v(vt+2)}, {v(vt)}, {s(sT+4, 2)}
    ''')

def nonce_load():
    k(f's_load_dword {s(sN0)}, {s(WS_, 2)}, {WS_N0}')
def nonce_make():
    k(f'''
    s_mul_i32 {s(sNONCE)}, {s(sN0)}, 0x9E3779B1
    s_add_u32 {s(sNONCE)}, {s(sNONCE)}, 0x7F4A7C15
    s_lshr_b32 {s(sT)}, {s(sNONCE)}, 15
    s_xor_b32 {s(sNONCE)}, {s(sNONCE)}, {s(sT)}
    ''')

P1_XN = 98304
def p1():
    XR = 16
    AQ, AK, AV = 72, 88, 104
    AF = 120
    BF = 16
    vXL, vWL, vXW, vXR, vBQ, vBV = 2, 3, 4, 5, 6, 7
    vA1, vA2, vAV, vAO = 232, 234, 235, 236
    T0 = 240
    k(f's_cmp_eq_u32 {s(sCG)}, 7')
    k(f's_cbranch_scc1 L_colsum')
    k(f'''
    v_lshrrev_b32 v8, 2, v1
    v_and_b32 v9, 3, v1
    s_lshl_b32 {s(sT)}, {s(sW)}, 4
    v_add_u32 v10, {s(sT)}, v8
    v_mul_u32_u24 {v(vXL)}, 896, v10
    v_lshl_add_u32 {v(vXL)}, v9, 4, {v(vXL)}
    s_mul_i32 {s(sT+1)}, {s(sRG)}, {64*896}
    ''')
    for j in range(14):
        k(f'buffer_load_dwordx4 {v(XR+4*j, 4)}, {v(vXL)}, {srd(X_)}, {s(sT+1)} offen offset:{64*j}')
    k(f'''
    v_lshrrev_b32 v11, 3, v1
    v_and_b32 v12, 7, v1
    v_lshlrev_b32 v13, 1, v11
    v_and_b32 v13, 4, v13
    v_xor_b32 v12, v12, v13
    v_mul_u32_u24 {v(vWL)}, 2688, v11
    v_lshl_add_u32 {v(vWL)}, v12, 4, {v(vWL)}
    s_mul_i32 {s(sT+2)}, {s(sW)}, {16*2688}
    s_lshl_b32 {s(sT+3)}, {s(sCG)}, 7
    s_add_u32 {s(sT+2)}, {s(sT+2)}, {s(sT+3)}
    s_lshl_b32 {s(sT+3)}, {s(sW)}, 11
    ''')
    sWG, sWL = sT+2, sT+3
    chunk_lds = lambda c: (c % 6) * 24576
    tick = {}
    def dma_chunk(c):
        for i in range(2):
            k(f's_add_u32 {s(sT+6)}, {s(sWG)}, {(64*c + 8*i)*2688}')
            for m in range(3):
                k(f's_add_u32 m0, {s(sWL)}, {chunk_lds(c) + m*8192 + i*1024 - m*896}')
                k(f'buffer_load_dwordx4 {v(vWL)}, {srd(WQKV_)}, {s(sT+6)} offen offset:{m*896} lds')
        tick[c] = k.mark()
    for c in range(4): dma_chunk(c)
    nonce_load()
    code_prefetch(T0)
    k(f'''
    v_mul_u32_u24 {v(vXW)}, 1056, v9
    v_lshl_add_u32 {v(vXW)}, v10, 4, {v(vXW)}
    v_add_u32 {v(vXW)}, {P1_XN}, {v(vXW)}
    v_lshrrev_b32 v8, 5, v1
    v_and_b32 v9, 31, v1
    s_lshr_b32 {s(sT+7)}, {s(sW)}, 1
    s_and_b32 {s(sT+8)}, {s(sW)}, 1
    s_lshl_b32 {s(sT+9)}, {s(sT+7)}, 9
    v_mul_u32_u24 {v(vXR)}, 1056, v8
    v_lshl_add_u32 {v(vXR)}, v9, 4, {v(vXR)}
    s_add_u32 {s(sT+9)}, {s(sT+9)}, {P1_XN}
    v_add_u32 {v(vXR)}, {s(sT+9)}, {v(vXR)}
    ''')
    sRH, sCH = sT+7, sT+8
    k(f'''
    v_bfe_u32 v10, v1, 2, 2
    v_and_b32 v11, 3, v1
    v_bfe_u32 v12, v1, 4, 1
    v_lshl_add_u32 v13, v8, 3, v10
    v_lshlrev_b32 v13, 7, v13
    v_lshrrev_b32 v10, 1, v10
    v_xor_b32 v10, {s(sCH)}, v10
    v_lshl_add_u32 v13, v10, 6, v13
    v_lshl_add_u32 v14, v12, 2, v11
    v_lshl_add_u32 {v(vBV)}, v14, 3, v13
    v_and_b32 v15, 1, v14
    v_lshrrev_b32 v14, 1, v14
    v_lshl_add_u32 v14, v15, 2, v14
    v_lshl_add_u32 {v(vBQ)}, v14, 3, v13
    ''')
    sTT, sBLK = sT+10, sT+11
    k(f'''
    s_lshl_b32 {s(sTT)}, {s(sCG)}, 1
    s_add_u32 {s(sTT)}, {s(sTT)}, {s(sCH)}
    s_lshl_b32 {s(sBLK)}, {s(sRG)}, 1
    s_add_u32 {s(sBLK)}, {s(sBLK)}, {s(sRH)}
    s_lshl_b32 {s(sBLK)}, {s(sBLK)}, 12
    s_lshl_b32 {s(sT+12)}, {s(sTT)}, 2
    v_lshl_add_u32 v10, v8, 1, {s(sT+12)}
    v_lshlrev_b32 v15, 4, v9
    v_mov_b32 {v(vA2)}, {hx(OOB)}
    ''')
    MS = (s(sM+2, 2), s(sM+4, 2))
    for pp in range(2):
        if pp: k('v_add_u32 v10, 1, v10')
        k(f'''
        v_mul_u32_u24 v11, 37, v10
        v_lshrrev_b32 v11, 8, v11
        v_mul_u32_u24 v12, 7, v11
        v_sub_u32 v12, v10, v12
        v_lshrrev_b32 v13, 2, v12
        v_and_b32 v14, 3, v12
        v_lshl_add_u32 v13, v11, 1, v13
        v_lshlrev_b32 v13, 18, v13
        v_lshl_add_u32 v13, v14, 9, v13
        v_add_u32 {v(vA1+pp)}, v13, v15
        v_cmp_eq_u32 {MS[pp]}, 3, v12
        v_add_u32 v13, 0x40000, {v(vA1+pp)}
        v_cndmask_b32 {v(vA2)}, {v(vA2)}, v13, {MS[pp]}
        ''')
    k(f'''
    s_lshl_b32 {s(sT+12)}, {s(sTT)}, 5
    v_add_u32 v10, {s(sT+12)}, v9
    v_mul_u32_u24 v11, 586, v10
    v_lshrrev_b32 v11, 14, v11
    v_mul_u32_u24 v12, 28, v11
    v_sub_u32 v12, v10, v12
    v_lshlrev_b32 v11, 18, v11
    v_lshl_add_u32 v11, v8, 9, v11
    v_lshl_add_u32 {v(vAV)}, v12, 4, v11
    v_cmp_eq_u32 vcc, 27, v12
    v_add_u32 v11, 16, {v(vAV)}
    v_mov_b32 v12, {hx(OOB)}
    v_cndmask_b32 {v(vAO)}, v12, v11, vcc
    s_add_u32 {s(sT+12)}, {s(sBLK)}, {WS_KV}
    s_add_u32 {s(sT+13)}, {s(sBLK)}, {WS_Q}
    ''')
    sKV, sQ = sT+12, sT+13
    nonce_make()
    k(f'''
    v_mov_b32 v8, 0
    v_mov_b32 v9, 0
    v_mov_b32 v10, 0
    v_mov_b32 v11, 0
    v_mov_b32 v12, 0x3f803f80
    ''')
    for r in range(56):
        k(f'v_dot2c_f32_bf16 {v(8 + (r & 1))}, {v(XR+r)}, v12')
        k(f'v_dot2c_f32_bf16 {v(10 + (r & 1))}, {v(XR+r)}, {v(XR+r)}')
    stamp()
    k(f'''
    v_add_f32 v8, v8, v9
    v_add_f32 v10, v10, v11
    v_add_f32_dpp v9, v8, v8 quad_perm:[1,0,3,2] row_mask:0xf bank_mask:0xf
    v_add_f32_dpp v11, v10, v10 quad_perm:[1,0,3,2] row_mask:0xf bank_mask:0xf
    v_add_f32_dpp v8, v9, v9 quad_perm:[2,3,0,1] row_mask:0xf bank_mask:0xf
    v_add_f32_dpp v10, v11, v11 quad_perm:[2,3,0,1] row_mask:0xf bank_mask:0xf
    v_mul_f32 v8, {hx(fbits(1/448))}, v8
    v_mul_f32 v10, {hx(fbits(1/448))}, v10
    v_fma_f32 v10, -v8, v8, v10
    v_max_f32 v10, 0, v10
    v_add_f32 v10, {hx(fbits(1e-5))}, v10
    v_rsq_f32 v10, v10
    v_mul_f32 v11, v8, v10
    v_sub_f32 v11, 0, v11
    ''')
    for j in range(14):
        for r in range(4):
            x = XR + 4*j + r
            t = T0 + 4 + 2*r
            k(f'v_lshlrev_b32 {v(t)}, 16, {v(x)}')
            k(f'v_and_b32 {v(t+1)}, 0xffff0000, {v(x)}')
        for r in range(4):
            t = T0 + 4 + 2*r
            k(f'v_pk_fma_f32 {v(t,2)}, {v(t,2)}, v[10:11], v[10:11] op_sel:[0,0,1] op_sel_hi:[1,0,1]')
        for r in range(4):
            t = T0 + 4 + 2*r
            k(f'v_cvt_pk_bf16_f32 {v(XR+4*j+r)}, {v(t)}, {v(t+1)}')
        k(f'ds_write_b128 {v(vXW)}, {v(XR+4*j,4)} offset:{j*4224}')
    k.wait_vm(tick[0])
    k('s_waitcnt lgkmcnt(0)')
    k('s_barrier')
    stamp()
    def rdB(ks):
        c, kk = divmod(ks, 4)
        base = (chunk_lds(c) % 49152) + kk*2048
        for m in range(3):
            reg = BF + (ks % 3)*12 + 4*m
            ad = vBV if m == 2 else vBQ
            for rd in range(2):
                k(f'ds_read_b64_tr_b16 {v(reg+2*rd,2)}, {v(ad)} offset:{base + m*8192 + rd*512}')
    def rdA(ks): k(f'ds_read_b128 {v(AF+4*ks,4)}, {v(vXR)} offset:{ks*2112}')
    rdA(0); rdB(0); rdA(1); rdB(1)
    nextA = 2
    for ks in range(28):
        p = ks + 2
        if p < 28:
            c, kk = divmod(p, 4)
            if kk == 0:
                if c == 1:
                    while nextA < 28: rdA(nextA); nextA += 1
                    k('s_waitcnt lgkmcnt(0)')
                k.wait_vm(tick[c])
                k('s_barrier')
                if c == 1: dma_chunk(4); dma_chunk(5)
                if c == 2: dma_chunk(6)
                if c in (2, 4, 6):
                    d = 49152 if c < 6 else -98304
                    k(f'v_add_u32 {v(vBQ)}, {hx(d)}, {v(vBQ)}')
                    k(f'v_add_u32 {v(vBV)}, {hx(d)}, {v(vBV)}')
            if nextA < 28:
                for _ in range(13 if nextA + 13 <= 28 else 28 - nextA): rdA(nextA); nextA += 1
            rdB(p)
        b = BF + (ks % 3)*12
        A = v(AF+4*ks, 4)
        for m, acc in enumerate((AQ, AK, AV)):
            C = '0' if ks == 0 else v(acc, 16)
            W = v(b+4*m, 4)
            op = f'{A}, {W}' if m == 2 else f'{W}, {A}'
            k(f'v_mfma_f32_32x32x16_bf16 {v(acc,16)}, {op}, {C}')
    stamp()
    qs = 28**-0.5 * math.log2(math.e)
    k(f'''
    v_mov_b32 {v(T0)}, {hx(fbits(qs))}
    v_mov_b32 {v(T0+12)}, 0x3f803f80
    v_mov_b32 {v(T0+13)}, 0x3f803f80
    v_mov_b32 {v(T0+14)}, 0x3f803f80
    v_mov_b32 {v(T0+15)}, 0x3f803f80
    v_mov_b32 {v(T0+1)}, 0x3f80
    ''')
    for r in range(16): k(f'v_mul_f32 {v(AQ+r)}, {v(T0)}, {v(AQ+r)}')
    PQ, PK, PV = 16, 28, 40
    for src, dst, base, pad0, pad1 in ((AK, PK, sKV, v(T0+12), v(T0+1)), (AQ, PQ, sQ, '0', '0')):
        for r in range(8): k(f'v_cvt_pk_bf16_f32 {v(dst+r)}, {v(src+2*r)}, {v(src+2*r+1)}')
        k(f'''
        v_mov_b32 {v(dst+8)}, {pad0}
        v_mov_b32 {v(dst+9)}, {pad1}
        v_cndmask_b32 {v(dst+10)}, {v(dst+6)}, {v(dst+2)}, {MS[0]}
        v_cndmask_b32 {v(dst+11)}, {v(dst+7)}, {v(dst+3)}, {MS[0]}
        ''')
        for pp in range(2):
            k(f'v_cndmask_b32 {v(dst+4*pp+2)}, {v(dst+4*pp+2)}, {v(dst+8)}, {MS[pp]}')
            k(f'v_cndmask_b32 {v(dst+4*pp+3)}, {v(dst+4*pp+3)}, {v(dst+9)}, {MS[pp]}')
        for pp in range(2):
            k(f'buffer_store_dwordx4 {v(dst+4*pp,4)}, {v(vA1+pp)}, {srd(WS_)}, {s(base)} offen sc1')
        k(f'buffer_store_dwordx4 {v(dst+8,4)}, {v(vA2)}, {srd(WS_)}, {s(base)} offen sc1')
        if src == AK:
            for r in range(8): k(f'v_cvt_pk_bf16_f32 {v(PV+r)}, {v(AV+2*r)}, {v(AV+2*r+1)}')
            for c in range(2):
                k(f'buffer_store_dwordx4 {v(PV+4*c,4)}, {v(vAV)}, {srd(WS_)}, {s(sKV)} offen offset:{2048+1024*c} sc1')
                k(f'buffer_store_dwordx4 {v(T0+12,4)}, {v(vAO)}, {srd(WS_)}, {s(sKV)} offen offset:{2048+1024*c} sc1')
    k('s_branch L_p1_sig')
    k.label('L_colsum')
    k.vmq = []; k.lgq = []
    nonce_load()
    code_prefetch(T0)
    nonce_make()
    k(f'''
    s_cmp_ge_u32 {s(sRG)}, 28
    s_cbranch_scc1 L_colsum_done
    v_lshrrev_b32 v8, 3, v1
    v_and_b32 v9, 7, v1
    s_movk_i32 {s(sT+1)}, 3584
    v_mul_lo_u32 v10, v8, {s(sT+1)}
    v_lshl_add_u32 v10, v9, 4, v10
    s_mul_i32 {s(sT+1)}, {s(sW)}, {112*3584}
    s_lshl_b32 {s(sT+2)}, {s(sRG)}, 7
    s_add_u32 {s(sT+1)}, {s(sT+1)}, {s(sT+2)}
    ''')
    for j in range(14):
        k(f'buffer_load_dwordx4 {v(16+4*j,4)}, v10, {srd(WIN_)}, {s(sT+1)} offen')
        k(f's_add_u32 {s(sT+1)}, {s(sT+1)}, {8*3584}')
    for r in range(8): k(f'v_mov_b32 {v(80+r)}, 0')
    for j in range(14):
        for r in range(4):
            k(f'v_lshlrev_b32 v12, 16, {v(16+4*j+r)}')
            k(f'v_and_b32 v13, 0xffff0000, {v(16+4*j+r)}')
            k(f'v_add_f32 {v(80+2*r)}, {v(80+2*r)}, v12')
            k(f'v_add_f32 {v(81+2*r)}, {v(81+2*r)}, v13')
    k(f'''
    v_lshlrev_b32 v11, 5, v0
    ds_write_b128 v11, v[80:83]
    ds_write_b128 v11, v[84:87] offset:16
    s_waitcnt lgkmcnt(0)
    s_barrier
    v_lshlrev_b32 v11, 2, v1
    ''')
    for j in range(32): k(f'ds_read_b32 {v(16+j)}, v11 offset:{256*j}')
    for j in range(1, 32): k(f'v_add_f32 v16, v16, {v(16+j)}')
    k(f'''
    s_lshl_b32 {s(sT+1)}, {s(sRG)}, 8
    s_add_u32 {s(sT+1)}, {s(sT+1)}, {WS_CS}
    buffer_store_dword v16, v11, {srd(WS_)}, {s(sT+1)} offen sc1
    ''')
    k.label('L_colsum_done')
    k('s_waitcnt vmcnt(0) lgkmcnt(0)')
    if OPT['stamps']:
        for n in range(1, nstamp[0]): k(f's_mov_b32 {s(sSTAMP+2*n)}, {s(sSTAMP)}')
    k.label('L_p1_sig')
    k.vmq = []; k.lgq = []
    k(f'''
    s_lshl_b32 {s(sT+1)}, {s(sCG)}, 9
    s_lshr_b32 {s(sT+2)}, {s(sRG)}, 3
    s_lshl_b32 {s(sT+2)}, {s(sT+2)}, 7
    s_add_u32 {s(sT+1)}, {s(sT+1)}, {s(sT+2)}
    s_and_b32 {s(sT+2)}, {s(sRG)}, 7
    s_lshl_b32 {s(sT+2)}, {s(sT+2)}, 2
    s_add_u32 {s(sT+1)}, {s(sT+1)}, {s(sT+2)}
    s_add_u32 {s(sT+1)}, {s(sT+1)}, {WS_F1}
    ''')
    signal(sT+1, T0)
    k.vmq = []; k.lgq = []

def epilogue():
    k.label('L_fin')
    if OPT['stamps']:
        n = nstamp[0]
        k(f's_memtime {s(sSTAMP+2*n, 2)}')
        k('s_waitcnt vmcnt(0) lgkmcnt(0)')
        k(f'''
        s_lshl_b32 {s(sT)}, s2, 2
        s_add_u32 {s(sT)}, {s(sT)}, {s(sW)}
        s_lshl_b32 {s(sT)}, {s(sT)}, 7
        s_add_u32 {s(sT)}, {s(sT)}, {WS_STAMP}
        v_mov_b32 v3, 0
        ''')
        for i in range(n+1):
            k(f's_sub_u32 {s(sT+1)}, {s(sSTAMP+2*i)}, {s(sSTAMP)}')
            k(f'v_mov_b32 v2, {s(sT+1)}')
            k(f'buffer_store_dword v2, v3, {srd(WS_)}, {s(sT)} offen offset:{4*i}')
        k(f'v_mov_b32 v2, s100')
        k(f'buffer_store_dword v2, v3, {srd(WS_)}, {s(sT)} offen offset:{4*30}')
        k(f's_memrealtime {s(100, 2)}')
        k(f'v_mov_b32 v2, s100')
        k(f'buffer_store_dword v2, v3, {srd(WS_)}, {s(sT)} offen offset:{4*31}')
    k.label('L_end')

def bump_nonce(t):
    L = lbl('bump')
    k(f'''
    s_lshl_b32 {s(sT+1)}, s2, 2
    s_add_u32 {s(sT+1)}, {s(sT+1)}, {s(sW)}
    s_cmp_lg_u32 {s(sT+1)}, 0
    s_cbranch_scc1 {L}
    s_add_u32 {s(sT+1)}, {s(sN0)}, 1
    v_mov_b32 {v(t)}, {s(sT+1)}
    v_mov_b32 {v(t+1)}, {WS_N0}
    ''')
    k.auto = False
    k(f'buffer_store_dword {v(t)}, {v(t+1)}, {srd(WS_)}, 0 offen sc1')
    k.vmq.pop()
    k.auto = True
    k.label(L)

import phases
phases.setup(globals())

def build():
    prologue()
    p1()
    stamp()
    for n, f in ((2, phases.p2), (3, phases.p3), (4, phases.p4), (5, phases.p5), (6, phases.p6)):
        if OPT['stop'] >= n: f()
    epilogue()
    nn = k.fix_hazards(verbose=bool(OPT.get('v')))
    hdr = open(os.path.join(os.path.dirname(os.path.abspath(__file__)), 'header.txt')).read()
    txt = hdr + f'''; @launch grid=(256,1,1) block=(256,1,1) lds=163840
.amdgcn_target "amdgcn-amd-amdhsa--gfx950"
.text
.globl {NAME}_kernel
.p2align 8
.type {NAME}_kernel,@function
{NAME}_kernel:
{k.text()}
    s_endpgm
.section .rodata,"a"
.p2align 6
.amdhsa_kernel {NAME}_kernel
  .amdhsa_next_free_vgpr 512
  .amdhsa_next_free_sgpr 102
  .amdhsa_accum_offset 256
  .amdhsa_group_segment_fixed_size 0
  .amdhsa_kernarg_size 88
  .amdhsa_user_sgpr_count 2
  .amdhsa_user_sgpr_kernarg_segment_ptr 1
  .amdhsa_system_sgpr_workgroup_id_x 1
  .amdhsa_float_denorm_mode_32 3
.end_amdhsa_kernel
'''
    open(sys.argv[1], 'w').write(txt)
    print('instructions', len(k.ins), 'hazard wait states inserted', nn, 'stamps', nstamp[0])

build()
```

```python
from mbutil import *
def wrap(body, iters):
    return f"""
%PRE%
    s_load_dwordx4 s[4:7], s[0:1], 0
    s_waitcnt lgkmcnt(0)
    s_mov_b32 s8, s4
    s_mov_b32 s9, s5
    s_mov_b32 s10, 0x1000000
    s_mov_b32 s11, 0x20000
    s_mov_b32 s16, s6
    s_mov_b32 s17, s7
    s_mov_b32 s18, 0x1000000
    s_mov_b32 s19, 0x20000
    v_lshrrev_b32 v1, 6, v0
    s_lshl_b32 s3, s2, 4
    v_add_u32 v1, s3, v1
    v_lshlrev_b32 v1, 4, v1
    v_lshlrev_b32 v2, 4, v0
""" + "\n".join(f"    buffer_load_dwordx4 v[{16+4*i}:{19+4*i}], v2, s[16:19], 0 offen offset:{(i*64)%4096}" for i in range(56)) + f"""
    s_waitcnt vmcnt(0)
    s_mov_b32 s20, 0
    s_barrier
    s_memtime s[12:13]
    s_memrealtime s[22:23]
    s_waitcnt lgkmcnt(0)
LOOP_%NAME%:
{body}
    s_add_u32 s20, s20, 1
    s_cmp_lt_u32 s20, {iters}
    s_cbranch_scc1 LOOP_%NAME%
    s_nop 15
    s_nop 15
    s_memtime s[14:15]
    s_memrealtime s[24:25]
    s_waitcnt lgkmcnt(0)
    s_sub_u32 s14, s14, s12
    s_sub_u32 s24, s24, s22
    v_mov_b32 v2, s14
    v_mov_b32 v3, s24
    buffer_store_dwordx2 v[2:3], v1, s[8:11], 0 offen
    s_waitcnt vmcnt(0)
END_%NAME%:
"""
Q, O, S, P, KV = 16, 48, 112, 144, 160
def att(mf=True, ex=True, cvt=True, m16=False):
    s = []
    for t in range(16):
        Sc, Sn = S + 16*(t & 1), S + 16*((t+1) & 1)
        Pc, Pp = P + 8*(t & 1), P + 8*((t+1) & 1)
        kb = KV + 16*(((t+1) >> 2) & 3); qb = Q + 8*((t+1) & 3)
        vb = KV + 16*(((t-1) >> 2) & 3) + 8; ob = O + 16*((t-1) & 3)
        def e(g):
            if ex:
                for r in range(4): s.append(f'v_exp_f32 v{Sc+4*g+r}, v{Sc+4*g+r}')
            if cvt:
                for r in range(2): s.append(f'v_cvt_pk_bf16_f32 v{Pc+2*g+r}, v{Sc+4*g+2*r}, v{Sc+4*g+2*r+1}')
        def m(d, a, b, c, h):
            if not mf: return
            if not m16: s.append(f'v_mfma_f32_32x32x16_bf16 v[{d}:{d+15}], v[{a}:{a+3}], v[{b}:{b+3}], ' + (f'v[{d}:{d+15}]' if c else '0'))
            else:
                for j in range(2):
                    dd = d + 8*h + 4*j
                    s.append(f'v_mfma_f32_16x16x32_bf16 v[{dd}:{dd+3}], v[{a}:{a+3}], v[{b}:{b+3}], ' + (f'v[{dd}:{dd+3}]' if (c and d >= O and d < S) else '0'))
        m(Sn, kb, qb, 0, 0); e(0); m(Sn, kb+4, qb+4, 1, 1); e(1); m(ob, vb, Pp, 1, 0); e(2); m(ob, vb+4, Pp+4, 1, 1); e(3)
    return "\n".join(s)
body = att()
pres = {"all": "", "xcd4": "s_and_b32 s30, s2, 4\ns_cbranch_scc1 END_%NAME%", "xcd1": "s_and_b32 s30, s2, 7\ns_cbranch_scc1 END_%NAME%",
        "halfcu": "s_and_b32 s30, s2, 8\ns_cbranch_scc1 END_%NAME%", "quartcu": "s_and_b32 s30, s2, 24\ns_cbranch_scc1 END_%NAME%",
        "cu78": "s_lshr_b32 s30, s2, 3\ns_and_b32 s30, s30, 7\ns_cmp_eq_u32 s30, 7\ns_cbranch_scc1 END_%NAME%"}
acts = {"all": lambda b: True, "xcd4": lambda b: not b & 4, "xcd1": lambda b: not b & 7, "halfcu": lambda b: not b & 8, "quartcu": lambda b: not b & 24, "cu78": lambda b: (b >> 3) & 7 != 7}
ks = [(n, wrap(body, 4).replace("%PRE%", p).replace("%NAME%", n), 256, 40, 256) for n, p in pres.items()]
co = build(ks, "mb20k")
if os.path.exists("/dev/kfd"):
    m = Mod(co)
    out = DeviceBuffer(1<<24)
    rng = np.random.default_rng(0)
    x = (rng.standard_normal(1<<20)*0.3).astype(np.float32)
    data = DeviceBuffer.from_numpy((x.view(np.uint32) >> 16).astype(np.uint16))
    zero = DeviceBuffer(1<<21); memset(zero, 0)
    for n, _, _, _, _ in ks:
        res = []
        for d in (data, zero):
            for rep in range(3):
                time.sleep(0.002)
                m.launch(n, 256, 256, [out.ptr, d.ptr], lds=100*1024); sync()
                r = out.to_numpy(np.uint32, (256, 16, 4))[[b for b in range(256) if acts[n](b)], :4]
            c, t = np.median(r[:,:,0]), np.median(r[:,:,1])
            res.append(f"clk {c:.0f} us {t/100:.2f} GHz {c/t/10:.2f}")
        print(n, " | zero: ".join(res))
```
